```python
import torch

def _softmax(x, axis=-1):
    return torch.softmax(x, dim=axis)
def _gelu(x):
    return torch.nn.functional.gelu(x, approximate="tanh")
def _silu(x):
    return torch.nn.functional.silu(x)
def _sigmoid(x):
    return torch.sigmoid(x)
def _layernorm(x, axis=-1, eps=1e-5):
    m = x.mean(dim=axis, keepdim=True)
    v = x.var(dim=axis, keepdim=True, unbiased=False)
    return (x - m) / torch.sqrt(v + eps)
def _scatter_add(tgt, idx, src, axis=0):
    return tgt.clone().index_add_(axis, idx, src)
def _segment_sum(src, seg, n):
    out = torch.zeros((n,) + src.shape[1:], dtype=src.dtype)
    return out.index_add_(0, seg, src)
def _pad(x, pw):
    flat = tuple(v for pair in reversed(pw) for v in pair)
    return torch.nn.functional.pad(x, flat)

kernel_name = 'gated_mix__ssm_conv_s4__dense_activation_relu__prompt'

def setup_inputs():

    _w = (lambda a: (lambda t: t.to(torch.bfloat16) if t.is_floating_point() else t)(torch.as_tensor(a)))
    def _A_setup():
        B, L, D, N = 1, 2048, 512, 128
        A_re = -(lambda _x: torch.exp(torch.as_tensor(_x)))((lambda *s: torch.randn(*s, dtype=torch.bfloat16) * 3.2)(D, N))
        A_im = torch.pi * (lambda *s: torch.randn(*s, dtype=torch.bfloat16) * 0.1)(D, N)
        B_re = (lambda *s: torch.randn(*s, dtype=torch.bfloat16) * 0.4)(D, N)
        B_im = (lambda *s: torch.randn(*s, dtype=torch.bfloat16) * 0.4)(D, N)
        C_re = (lambda *s: torch.randn(*s, dtype=torch.bfloat16) * 0.4)(D, N)
        C_im = (lambda *s: torch.randn(*s, dtype=torch.bfloat16) * 0.4)(D, N)
        log_dt = (lambda *s: torch.randn(*s, dtype=torch.bfloat16) * 0.1)(D) * 0.5 - 4.0
        Dskip = (lambda *s: torch.randn(*s, dtype=torch.bfloat16) * 0.2)(D)
        return {
            "u": _w((lambda *s: torch.randn(*s, dtype=torch.bfloat16) * 0.05)(B, L, D)),
            "A_re": _w(A_re),
            "A_im": _w(A_im),
            "B_re": _w(B_re),
            "B_im": _w(B_im),
            "C_re": _w(C_re),
            "C_im": _w(C_im),
            "log_dt": _w(log_dt),
            "Dskip": _w(Dskip),
        }
    _A_in = _A_setup()

    def _B_setup():
        B, S, D, Dff = 1, 2048, 512, 1376
        return {
            "x": _w((lambda *s: torch.randn(*s, dtype=torch.bfloat16) * 0.05)(B, S, D)),
            "w1": _w((lambda *s: torch.randn(*s, dtype=torch.bfloat16) * 0.05)(D, Dff)),
            "w2": _w((lambda *s: torch.randn(*s, dtype=torch.bfloat16) * 0.05)(Dff, D)),
        }
    _B_in = _B_setup()

    return {
        "A_u": _A_in["u"],
        "A_A_re": _A_in["A_re"],
        "A_A_im": _A_in["A_im"],
        "A_B_re": _A_in["B_re"],
        "A_B_im": _A_in["B_im"],
        "A_C_re": _A_in["C_re"],
        "A_C_im": _A_in["C_im"],
        "A_log_dt": _A_in["log_dt"],
        "A_Dskip": _A_in["Dskip"],
        "B_x": _B_in["x"],
        "B_w1": _B_in["w1"],
        "B_w2": _B_in["w2"],
        "gate_w": _w((lambda *s: torch.randn(*s, dtype=torch.bfloat16) * 0.05)(512) * 16.0),
    }

def reference(A_u, A_A_re, A_A_im, A_B_re, A_B_im, A_C_re, A_C_im, A_log_dt, A_Dskip, B_x, B_w1, B_w2, gate_w):
    def _A_ref(u, A_re, A_im, B_re, B_im, C_re, C_im, log_dt, Dskip):
        Bsz, L, D = u.shape
        dt = torch.exp(log_dt)[:, None]
        A = A_re + 1j * A_im
        Bc = B_re + 1j * B_im
        Cc = C_re + 1j * C_im
        logdA = dt * A
        dB = dt * Bc
        l = (lambda x, dt: x.to(dt))(torch.arange(L), A_re.dtype)
        P = torch.exp(logdA[:, :, None] * l[None, None, :])
        K = torch.einsum("dn,dnl,dn->dl", Cc, P, dB).real
        L2 = 2 * L
        Kp = _pad(K, ((0, 0), (0, L)))
        up = (lambda x, *d: x.permute(*d))(u, 0, 2, 1)
        up = _pad(up, ((0, 0), (0, 0), (0, L)))
        Kf = (lambda x, axes=(-2,-1): torch.fft.rfft2(x.float(), dim=axes))(Kp[:, None, :], axes=(-2, -1))
        Uf = (lambda x, axes=(-2,-1): torch.fft.rfft2(x.float(), dim=axes))(up[:, :, None, :], axes=(-2, -1))
        Yf = Uf * Kf[None, :, :, :]
        y = (lambda x, s, axes=(-2,-1): torch.fft.irfft2(x, s=s, dim=axes).to(torch.bfloat16))(Yf, (1, L2), axes=(-2, -1))[:, :, 0, :L]
        y = (lambda x, *d: x.permute(*d))(y, 0, 2, 1) + u * Dskip[None, None, :]
        return y

    def _B_ref(x, w1, w2):
        h = torch.einsum("bsd,df->bsf", x, w1)
        zero = torch.zeros_like(h)
        h = torch.maximum(h, zero)
        return torch.einsum("bsf,fd->bsd", h, w2)

    x = A_u
    g = _sigmoid((x * gate_w).sum(-1, keepdims=True))
    a = _A_ref(x, A_A_re, A_A_im, A_B_re, A_B_im, A_C_re, A_C_im, A_log_dt, A_Dskip)
    b = _B_ref(x, B_w1, B_w2)
    return g * a + (1 - g) * b
```

```python
import re
TRANS = ('v_exp_f32','v_log_f32','v_rcp_f32','v_rsq_f32','v_sqrt_f32','v_sin_f32','v_cos_f32')
def regs_of(tok):
    tok = tok.strip()
    neg = tok.lstrip('-').strip('|')
    m = re.fullmatch(r'([vas])\[(\d+):(\d+)\]', neg)
    if m: return [(m.group(1), i) for i in range(int(m.group(2)), int(m.group(3))+1)]
    m = re.fullmatch(r'([vas])(\d+)', neg)
    if m: return [(m.group(1), int(m.group(2)))]
    if neg == 'vcc': return [('s','vcc')]
    if neg == 'm0': return [('s','m0')]
    if neg == 'exec': return [('s','exec')]
    return []
class Ins:
    def __init__(self, text):
        self.text = text
        t = text.split(';')[0].strip()
        parts = t.split(None, 1)
        self.op = parts[0]
        ops = []
        if len(parts) > 1:
            rest = parts[1]
            toks = [x.strip() for x in rest.split(',')]
            out = []
            for k, x in enumerate(toks):
                if '[' in x and ']' not in x: out.append(x); continue
                out.append(x)
            ops = []
            for x in out:
                ops.append(x.split()[0] if x else x)
        self.ops = ops
        op = self.op
        self.kind = ('mfma' if op.startswith('v_mfma') else 'valu' if op.startswith('v_') else 'ds' if op.startswith('ds_') else
                     'vmem' if op.startswith(('buffer_','global_')) else 'salu' if op.startswith('s_') else 'other')
        self.lds_dma = self.kind == 'vmem' and re.search(r'\blds\b', t) is not None
        self.dpp = 'dpp' in op or 'row_shr' in t or 'quad_perm' in t or 'row_shl' in t
        R = [regs_of(x) for x in ops]
        flat = lambda L: [r for x in L for r in x]
        self.w = []; self.r = []
        if self.kind == 'mfma':
            self.w = R[0]; self.r = flat(R[1:]); self.A = R[1]; self.B = R[2]; self.C = R[3] if len(R) > 3 else []
        elif self.kind == 'valu':
            if op.startswith('v_cmp'):
                self.w = R[0]; self.r = flat(R[1:])
            elif op.startswith('v_permlane'):
                self.w = flat(R[:2]); self.r = flat(R[:2])
            else:
                self.w = R[0]; self.r = flat(R[1:])
                if op.startswith('v_cndmask') and len(ops) == 3: self.r += [('s','vcc')]
                if op.startswith(('v_fmac','v_mac','v_pk_fmac','v_dot2c')) or 'dpp' in op or 'd16' in op: self.r += R[0]
        elif self.kind == 'ds':
            if op.startswith(('ds_read','ds_bpermute','ds_permute','ds_swizzle')): self.w = R[0]; self.r = flat(R[1:])
            else: self.r = flat(R)
        elif self.kind == 'vmem':
            if 'load' in op and not self.lds_dma:
                self.w = R[0]; self.r = flat(R[1:])
                if 'd16' in op: self.r += R[0]
            else: self.r = flat(R)
        elif self.kind == 'salu':
            if op.startswith(('s_cmp','s_waitcnt','s_barrier','s_nop','s_branch','s_cbranch','s_endpgm','s_sleep','s_setprio','s_bitcmp')):
                self.r = flat(R)
            else:
                self.w = R[0] if R else []; self.r = flat(R[1:])
        self.states = 1
        if op == 's_nop': self.states = int(ops[0]) + 1
class A:
    def __init__(self):
        self.lines = []; self.hist = []
        self.vm = []; self.lg = []
        self.nnop = 0
    def raw(self, s): self.lines.append(s)
    def comment(self, s): self.lines.append('; ' + s)
    def label(self, name):
        self.lines.append(name + ':')
    def need(self, ins):
        need = 0; dist = 0
        W = lambda p: set(p.w)
        rs = set(ins.r); ws = set(ins.w)
        for p in reversed(self.hist):
            if dist > 12: break
            req = 0
            pw = set(p.w)
            if p.kind == 'valu':
                vw = {x for x in pw if x[0] in 'va'}; sw = {x for x in pw if x[0] == 's'}
                if ins.kind == 'mfma' and vw & rs: req = max(req, 2)
                if ins.kind == 'valu' and p.op.startswith(TRANS) and (vw & rs) : req = max(req, 1)
                if ins.kind == 'valu' and (ins.dpp or ins.op.startswith('v_permlane')) and vw & rs: req = max(req, 2)
                if ins.kind == 'valu' and ins.op.startswith(('v_readfirstlane','v_readlane')) and vw & rs: req = max(req, 1)
                if ins.kind == 'valu' and sw & rs: req = max(req, 2)
                if ins.kind == 'vmem' and sw & rs: req = max(req, 5)
                if ins.kind == 'valu' and ('sdwa' in p.op or p.dpp) and vw & rs: req = max(req, 1)
            if p.kind == 'mfma':
                if ins.kind == 'mfma':
                    if pw & (set(ins.A) | set(ins.B)): req = max(req, 8)
                    if pw & set(ins.C) and ins.C != p.w: req = max(req, 6)
                    if pw & set(ins.w) and not (ins.C == p.w and ins.w == p.w): req = max(req, 6)
                elif ins.kind in ('valu','ds','vmem'):
                    if pw & (rs | ws): req = max(req, 8)
                    if ins.kind == 'valu' and set(p.C) & ws: req = max(req, 3)
            if p.kind == 'salu' and ('s','m0') in pw and ins.lds_dma: req = max(req, 1)
            if p.kind == 'vmem' and 'store' in p.op and ('x4' in p.op or 'x3' in p.op) and ins.kind == 'valu':
                if set(p.r) & ws: req = max(req, 2)
            need = max(need, req - dist)
            dist += p.states
        return need
    def __call__(self, text):
        for ln in text.strip('\n').split('\n'):
            ln = ln.strip()
            if not ln: continue
            if ln.startswith(';'): self.lines.append(ln); continue
            if ln.endswith(':'): self.label(ln[:-1]); continue
            ins = Ins(ln)
            n = self.need(ins)
            if n > 0:
                nop = Ins(f's_nop {n-1}'); self.lines.append('    ' + nop.text); self.hist.append(nop); self.nnop += 1
            self.lines.append('    ' + ln); self.hist.append(ins)
            if len(self.hist) > 24: self.hist = self.hist[-24:]
    def vmop(self, text, tag):
        self(text); self.vm.append(tag)
    def dsop(self, text, tag='-'):
        self(text); self.lg.append(tag)
    def _wait(self, lst, tags, maxn):
        if isinstance(tags, str): tags = [tags]
        idx = -1
        for i, t in enumerate(lst):
            if t in tags: idx = i
        if idx < 0: return None
        n = len(lst) - 1 - idx
        return min(n, maxn), idx
    def wait_vm(self, tags):
        r = self._wait(self.vm, tags, 63)
        if r is None: return
        n, idx = r
        self(f's_waitcnt vmcnt({n})')
        self.vm = self.vm[len(self.vm)-n:] if n else []
    def wait_lg(self, tags):
        r = self._wait(self.lg, tags, 15)
        if r is None: return
        n, idx = r
        self(f's_waitcnt lgkmcnt({n})')
        self.lg = self.lg[len(self.lg)-n:] if n else []
    def wait_vm_all(self):
        self('s_waitcnt vmcnt(0)'); self.vm = []
    def wait_lg_all(self):
        self('s_waitcnt lgkmcnt(0)'); self.lg = []
    def snapshot(self): return (list(self.vm), list(self.lg), list(self.hist))
    def restore(self, s): self.vm, self.lg, self.hist = list(s[0]), list(s[1]), list(s[2])
    def merge(self, tag='pre'):
        self.vm = [tag]; self.lg = []
        self.hist = []
    def text(self): return '\n'.join(self.lines) + '\n'
def vr(b, n=1, k='v'): return f'{k}{b}' if n == 1 else f'{k}[{b}:{b+n-1}]'
```

```python
import sys
from asmlib import A, vr
KNAME = 'gated_mix__ssm_conv_s4__dense_activation_relu__prompt_kernel'
DEBUG = False
S = 86016
XS, WSL = 0, 49152
KREG = 18432
KIMG = S + 66048
KIMGC = 4336
KT = S + 74752
COPY = 4128
PBUF = S
XCH = S + 49152
ATL = S + 65536
UT0, UT1, HF, AT, GG, STAMP = 0, 0x220000, 0x480000, 0xA00000, 0xC00000, 0xD00000
UROW = 4224
sX, sW1, sW2, sWS, sOUT, sDBG, sH = 36, 40, 44, 48, 52, 56, 60
sW, sXC, sJ, sR, sC, sJT, sCTT, sCH, sRT, sCT = 64, 65, 66, 67, 68, 69, 70, 71, 72, 73
sT0, sT1, sT2, sT3, sT4, sT5 = 74, 75, 76, 77, 78, 79
sXo, sWo = 80, 81
sHo = 82
sSP = 86
sEX = 88
sM0 = 90
sK = 92
sST = 96
vL = 1
vXd0, vXd1, vWd0, vWd1, vWd2 = 2, 3, 4, 5, 6
vXr0, vXr1, vWe, vWo = 7, 8, 9, 10
vFT, vFH, vFA = 11, 12, 13
vUd = 14
vU0, vUb, vKr, vDs = 15, 16, 17, 18
vW2d = 19
vA2 = 20
vDsk = 24
vFl = 25
vHl = 26
vAd, vAr = 27, 28
vId = 29
vT = 32

class G:
    def __init__(self, stamps=False):
        self.a = A(); self.stamps = stamps; self.nst = 0; self.nlab = 0
    def lab(self, p):
        self.nlab += 1; return f'{p}_{self.nlab}'
    def stamp(self):
        if not self.stamps: return
        a = self.a
        assert not a.lg, a.lg
        a(f's_memtime s[{sST}:{sST+1}]\ns_waitcnt lgkmcnt(0)')
        a(f'v_writelane_b32 v31, s{sST}, {self.nst}')
        self.nst += 1
    def dma(self, voff, srd, soff, ldsaddr, tag, sc1=False, m0reg=None):
        a = self.a
        if m0reg is None: a(f's_mov_b32 m0, {ldsaddr}')
        else: a(f's_add_u32 m0, s{m0reg}, {ldsaddr}')
        return
    def poll_issue(self, vflag, tag):
        self.a.vmop(f'buffer_load_ubyte v{vFl}, v{vflag}, s[{sDBG}:{sDBG+3}], 0 offen sc1', tag)
    def poll_check(self, vflag, need, tag):
        a = self.a
        a.wait_vm(tag)
        lo, done = self.lab('POLL'), self.lab('POLLD')
        a(f'v_cmp_gt_u32 vcc, {need}, v{vFl}')
        a(f's_cbranch_vccz {done}')
        a(f's_mov_b32 s{sSP}, 3000')
        a.label(lo)
        a(f's_sleep 1')
        a(f'buffer_load_ubyte v{vFl}, v{vflag}, s[{sDBG}:{sDBG+3}], 0 offen sc1')
        a(f's_waitcnt vmcnt(0)')
        a(f'v_cmp_gt_u32 vcc, {need}, v{vFl}')
        a(f's_cbranch_vccz {done}')
        a(f's_sub_u32 s{sSP}, s{sSP}, 1')
        a(f's_cmp_lg_u32 s{sSP}, 0')
        a(f's_cbranch_scc1 {lo}')
        a.label(done)
    def publish(self, val):
        a = self.a; l = self.lab('PUB')
        a(f's_cmp_lg_u32 s{sW}, 0\ns_cbranch_scc1 {l}')
        a(f's_mov_b64 exec, 1')
        a(f'v_mov_b32 v30, {val}')
        a(f'buffer_store_byte v30, v{vId}, s[{sDBG}:{sDBG+3}], 0 offen sc1')
        a(f's_mov_b64 exec, -1')
        a.label(l)
    def prologue(self):
        a = self.a
        a(f'''
        s_cmp_ge_u32 s2, 256
        s_cbranch_scc1 END
        ''')
        if self.stamps:
            a(f's_memrealtime s[{sST}:{sST+1}]\ns_waitcnt lgkmcnt(0)\nv_writelane_b32 v31, s{sST}, 62')
            self.stamp()
        a(f'''
        s_load_dwordx16 s[4:19], s[0:1], 0
        s_load_dwordx16 s[20:35], s[0:1], 64
        v_and_b32 v{vL}, 63, v0
        v_lshrrev_b32 v{vT}, 6, v0
        s_and_b32 s{sXC}, s2, 7
        v_readfirstlane_b32 s{sW}, v{vT}
        s_lshr_b32 s{sJ}, s2, 3
        s_lshr_b32 s{sT0}, s{sXC}, 1
        s_and_b32 s{sT1}, s{sXC}, 1
        s_and_b32 s{sT2}, s{sJ}, 3
        s_lshl_b32 s{sR}, s{sT0}, 2
        s_add_u32 s{sR}, s{sR}, s{sT2}
        s_lshr_b32 s{sCT}, s{sJ}, 2
        s_lshl_b32 s{sC}, s{sT1}, 3
        s_add_u32 s{sC}, s{sC}, s{sCT}
        s_lshl_b32 s{sJT}, s{sT0}, 3
        s_and_b32 s{sT3}, s{sJ}, 7
        s_add_u32 s{sJT}, s{sJT}, s{sT3}
        s_lshl_b32 s{sCTT}, s{sT1}, 2
        s_lshr_b32 s{sT3}, s{sJ}, 3
        s_add_u32 s{sCTT}, s{sCTT}, s{sT3}
        s_lshl_b32 s{sCH}, s{sXC}, 6
        s_lshl_b32 s{sT3}, s{sJ}, 1
        s_add_u32 s{sCH}, s{sCH}, s{sT3}
        s_lshl_b32 s{sRT}, s{sXC}, 2
        s_add_u32 s{sRT}, s{sRT}, s{sT2}
        ''')
        t = vT
        a(f'''
        v_lshrrev_b32 v{t}, 3, v{vL}          ; l>>3
        v_and_b32 v{t+1}, 7, v{vL}            ; l&7
        v_lshrrev_b32 v{t+2}, 4, v{vL}        ; g = l>>4
        v_lshlrev_b32 v{t+3}, 10, v{t}        ; (l>>3)*1024
        v_lshl_add_u32 v{t+4}, v{t+1}, 4, v{t+3}
        v_xor_b32 v{t+5}, v{t+1}, v{t+2}
        v_lshl_add_u32 v{vXd0}, v{t+5}, 4, v{t+3}
        v_xor_b32 v{t+5}, 4, v{t+5}
        v_lshl_add_u32 v{vXd1}, v{t+5}, 4, v{t+3}
        v_lshlrev_b32 v{vUd}, 4, v{vL}
        ''')
        a(f's_cmp_ge_u32 s{sC}, 14\ns_cselect_b32 s{sT4}, 3, 15')
        for ii in range(3):
            a(f'''
            v_add_u32 v{t+5}, {64*ii}, v{vL}
            v_mul_u32_u24 v{t+6}, 0x5556, v{t+5}
            v_lshrrev_b32 v{t+6}, 18, v{t+6}       ; k = q/12
            v_mul_u32_u24 v{t+7}, 12, v{t+6}
            v_sub_u32 v{t+7}, v{t+5}, v{t+7}       ; p
            v_lshrrev_b32 v{t+8}, 3, v{t+6}
            v_lshlrev_b32 v{t+8}, 1, v{t+8}        ; 2*bit
            v_xor_b32 v{t+7}, v{t+7}, v{t+8}
            v_and_b32 v{t+7}, s{sT4}, v{t+7}
            v_mul_u32_u24 v{t+6}, 0xac0, v{t+6}    ; k*2752
            v_lshl_add_u32 v{vWd0+ii}, v{t+7}, 4, v{t+6}
            ''')
        a('s_waitcnt lgkmcnt(0)')
        def srd(s, p, n, off=0):
            if off: a(f's_add_u32 s{s}, s{p}, {off}\ns_addc_u32 s{s+1}, s{p+1}, 0')
            else: a(f's_mov_b32 s{s}, s{p}\ns_mov_b32 s{s+1}, s{p+1}')
            a(f's_mov_b32 s{s+2}, {n}\ns_mov_b32 s{s+3}, 0x20000')
        srd(sX, 4, 2097152)
        a(f'''
        s_lshl_b32 s{sT0}, s{sJT}, 6
        s_lshl_b32 s{sT1}, s{sW}, 4
        s_add_u32 s{sT0}, s{sT0}, s{sT1}          ; 64jt+16w
        s_lshl_b32 s{sT0}, s{sT0}, 10
        s_lshl_b32 s{sT2}, s{sCTT}, 7
        s_add_u32 s{sT0}, s{sT0}, s{sT2}
        s_mul_i32 s{sT3}, s{sW}, {KREG}
        s_add_u32 s{sT3}, s{sT3}, {S}
        s_mov_b32 m0, s{sT3}
        s_add_u32 s{sT1}, s{sT0}, 8192
        ''')
        a.vmop(f'buffer_load_dwordx4 v{t+4}, s[{sX}:{sX+3}], s{sT0} offen lds', 'tt')
        a(f's_add_u32 m0, s{sT3}, 1024\ns_nop 0')
        a.vmop(f'buffer_load_dwordx4 v{t+4}, s[{sX}:{sX+3}], s{sT1} offen lds', 'tt')
        a(f'''
        s_lshl_b32 s{sT0}, s{sJT}, 16
        s_sub_u32 s{sT0}, s{sT0}, 1024
        s_add_u32 s{sT0}, s{sT0}, s{sT2}
        s_lshl_b32 s{sT1}, s{sW}, 5
        s_add_u32 s{sT0}, s{sT0}, s{sT1}
        v_lshl_add_u32 v{t+5}, v{t}, 1, s{sT0}
        v_add_u32 v{t+6}, 16, v{t+5}
        ''')
        a.vmop(f'buffer_load_short_d16_hi v54, v{t+5}, s[{sX}:{sX+3}], 0 offen', 'tp')
        a.vmop(f'buffer_load_short_d16_hi v55, v{t+6}, s[{sX}:{sX+3}], 0 offen', 'tp')
        a(f'''
        s_lshr_b32 s{sT0}, s{sW}, 1
        s_add_u32 s{sT0}, s{sT0}, s{sCH}          ; channel
        s_and_b32 s{sT1}, s{sW}, 1
        s_lshl_b32 s{sT2}, s{sT0}, 8
        s_lshl_b32 s{sT1}, s{sT1}, 7
        s_add_u32 s{sT2}, s{sT2}, s{sT1}
        v_lshl_add_u32 v{t+5}, v{vL}, 1, s{sT2}
        s_lshl_b32 s{sT0}, s{sT0}, 1
        v_mov_b32 v{t+6}, s{sT0}
        ''')
        for i in range(6):
            a.vmop(f'global_load_ushort v{46+i}, v{t+5}, s[{6+2*i}:{7+2*i}]', 'kp')
        a.vmop(f'global_load_ushort v52, v{t+6}, s[18:19]', 'kp')
        a.vmop(f'global_load_ushort v53, v{t+6}, s[20:21]', 'kp')
        srd(sW1, 24, 1409024)
        a(f'''
        s_lshl_b32 s{sT0}, s{sR}, 7
        s_lshl_b32 s{sT1}, s{sW}, 5
        s_add_u32 s{sT0}, s{sT0}, s{sT1}
        s_lshl_b32 s{sXo}, s{sT0}, 10             ; (128R+32w)*1024
        s_min_u32 s{sT0}, s{sC}, 14
        s_mul_i32 s{sT0}, s{sT0}, 192
        s_mul_i32 s{sT1}, s{sW}, {16*2752}
        s_add_u32 s{sWo}, s{sT0}, s{sT1}
        s_lshl_b32 s{sT4}, s{sW}, 12
        s_mul_i32 s{sT5}, s{sW}, 3072
        s_add_u32 s{sT5}, s{sT5}, {WSL}
        ''')
        for st in range(3): self.g1_dma(st, True)
        srd(sW2, 26, 1409024)
        srd(sWS, 34, 0x1000000)
        srd(sOUT, 30, 2097152)
        srd(sDBG, 32, 256)
        srd(sH, 34, 5636096, HF)
        self.addr_calcs()
    def g1_dma(self, st, w1=True):
        a = self.a; slot = st % 3
        for i in range(4):
            a(f's_add_u32 m0, s{sT4}, {XS + slot*16384 + 1024*i}')
            a(f's_add_u32 s{sT0}, s{sXo}, {8*i*1024 + st*128}')
            a.vmop(f'buffer_load_dwordx4 v{vXd0 + (i&1)}, s[{sX}:{sX+3}], s{sT0} offen lds', f'g1_{st}')
        if w1:
            for ii in range(3):
                a(f's_add_u32 m0, s{sT5}, {slot*12288 + 1024*ii}')
                a(f's_add_u32 s{sT0}, s{sWo}, {st*64*2752}')
                a.vmop(f'buffer_load_dwordx4 v{vWd0+ii}, s[{sW1}:{sW1+3}], s{sT0} offen lds', f'g1_{st}')
    def addr_calcs(self):
        a = self.a; t = vT
        a(f'''
        v_and_b32 v{t+5}, 15, v{vL}              ; n
        v_lshrrev_b32 v{t+6}, 2, v{t+5}          ; r = n>>2
        v_and_b32 v{t+7}, 3, v{vL}               ; c
        v_and_b32 v{t+8}, 1, v{t+2}              ; g&1
        v_lshrrev_b32 v{t+9}, 1, v{t+2}          ; g>>1
        s_lshl_b32 s{sT0}, s{sW}, 12
        v_lshrrev_b32 v{t+10}, 1, v{t+5}
        v_xor_b32 v{t+10}, v{t+10}, v{t+2}       ; g ^ (n>>1)
        v_lshlrev_b32 v{t+11}, 7, v{t+5}
        v_add_u32 v{t+11}, s{sT0}, v{t+11}
        v_lshl_add_u32 v{vXr0}, v{t+10}, 4, v{t+11}
        v_xor_b32 v{t+10}, 4, v{t+10}
        v_lshl_add_u32 v{vXr1}, v{t+10}, 4, v{t+11}
        v_lshl_add_u32 v{t+10}, v{t+2}, 3, v{t+6}     ; 8g+r
        v_mul_u32_u24 v{t+10}, 192, v{t+10}
        v_lshl_add_u32 v{t+10}, v{t+7}, 3, v{t+10}
        v_add_u32 v{t+10}, {WSL}, v{t+10}
        v_lshlrev_b32 v{t+11}, 5, v{t+8}
        v_add_u32 v{vWe}, v{t+10}, v{t+11}
        v_sub_u32 v{vWo}, v{t+10}, v{t+11}
        v_and_b32 v{t+10}, 31, v{vL}
        v_lshrrev_b32 v{t+11}, 3, v{t+10}        ; q
        v_and_b32 v{t+12}, 7, v{t+10}            ; jj
        s_and_b32 s{sT0}, s{sXC}, 3
        s_lshl_b32 s{sT0}, s{sT0}, 6
        s_lshr_b32 s{sT1}, s{sXC}, 2
        s_add_u32 s{sT0}, s{sT0}, s{sT1}
        v_lshlrev_b32 v{t+12}, 3, v{t+12}
        v_lshl_add_u32 v{t+12}, v{t+11}, 1, v{t+12}
        v_add_u32 v{vFT}, s{sT0}, v{t+12}        ; 8*(8(xc&3)+jj)+2q+(xc>>2)
        v_lshl_add_u32 v{vFA}, v{t+10}, 3, s{sCT} ; 8*i + CT
        s_lshr_b32 s{sT0}, s{sRT}, 1
        s_lshr_b32 s{sT1}, s{sT0}, 2
        s_lshl_b32 s{sT1}, s{sT1}, 1
        s_and_b32 s{sT0}, s{sT0}, 3
        s_lshl_b32 s{sT0}, s{sT0}, 3
        s_add_u32 s{sT0}, s{sT0}, s{sT1}
        v_lshrrev_b32 v{t+11}, 3, v{t+5}         ; (i>>3) with i = l&15
        v_and_b32 v{t+12}, 7, v{t+5}
        v_lshl_add_u32 v{t+11}, v{t+12}, 5, v{t+11}
        v_add_u32 v{vFH}, s{sT0}, v{t+11}
        v_mov_b32 v{vId}, s2
        s_lshr_b32 s{sT0}, s{sW}, 1
        s_and_b32 s{sT1}, s{sW}, 1                ; hw
        s_mul_i32 s{sT2}, s{sT0}, {8*COPY}
        s_add_u32 s{sT2}, s{sT2}, {S}
        v_and_b32 v{t+10}, 7, v{t+5}              ; r
        v_lshrrev_b32 v{t+11}, 3, v{t+5}          ; beta
        v_mul_u32_u24 v{t+12}, {COPY}, v{t+10}
        v_lshl_add_u32 v{t+12}, v{t+11}, 8, v{t+12}
        v_lshl_add_u32 v{t+12}, v{t+2}, 4, v{t+12}
        v_add_u32 v{t+12}, s{sT2}, v{t+12}        ; vbase
        s_lshl_b32 s{sT3}, s{sT1}, 8
        v_subrev_u32 v{vUb}, s{sT3}, v{t+12}
        v_lshlrev_b32 v{t+13}, 5, v{t+10}
        v_lshl_add_u32 v{t+13}, v{t+2}, 4, v{t+13}
        v_add_u32 v{t+13}, {KT}, v{t+13}
        s_cmp_eq_u32 s{sT1}, 1
        s_cselect_b32 s{sT3}, 0, 1                ; hw? 0 : 1
        v_or_b32 v{t+11}, s{sT3}, v{t+11}
        v_cmp_ne_u32 vcc, 0, v{t+11}
        v_cndmask_b32 v{vU0}, v{t+13}, v{vUb}, vcc
        v_sub_u32 v{t+10}, v{t+5}, v{t+2}         ; m - kg
        v_add_u32 v{t+10}, 3, v{t+10}
        v_lshlrev_b32 v{t+10}, 4, v{t+10}
        s_mul_i32 s{sT2}, s{sT0}, {KIMGC}
        s_lshl_b32 s{sT3}, s{sT1}, 8
        s_add_u32 s{sT2}, s{sT2}, s{sT3}
        s_add_u32 s{sT2}, s{sT2}, {KIMG}
        v_add_u32 v{vKr}, s{sT2}, v{t+10}
        s_mul_i32 s{sT2}, s{sT0}, {8*COPY}
        s_lshl_b32 s{sT3}, s{sT1}, 11
        s_add_u32 s{sT2}, s{sT2}, s{sT3}
        s_add_u32 s{sT2}, s{sT2}, {S + 7*COPY}
        v_lshlrev_b32 v{t+10}, 8, v{t+9}
        v_lshl_add_u32 v{t+10}, v{t+5}, 4, v{t+10}
        v_lshl_add_u32 v{t+10}, v{t+8}, 3, v{t+10}
        v_add_u32 v{vDs}, s{sT2}, v{t+10}
        v_lshlrev_b32 v{t+10}, 1, v{t+2}          ; 2*((l>>4)&3)
        v_xor_b32 v{t+10}, v{t+10}, v{t+1}
        v_lshlrev_b32 v{t+11}, 10, v{t}
        v_lshl_add_u32 v{vW2d}, v{t+10}, 4, v{t+11}
        v_lshlrev_b32 v{t+11}, 12, v{t}
        v_lshl_add_u32 v{vAd}, v{t+10}, 4, v{t+11}
        v_lshrrev_b32 v{t+10}, 1, v{t+6}          ; r>>1
        v_lshl_add_u32 v{t+10}, v{t+2}, 1, v{t+10}
        v_and_b32 v{t+10}, 3, v{t+10}             ; x
        v_lshl_add_u32 v{t+11}, v{t+2}, 2, v{t+6} ; 4g+r
        v_lshlrev_b32 v{t+11}, 7, v{t+11}
        v_lshl_add_u32 v{t+11}, v{t+7}, 3, v{t+11}
        s_mul_i32 s{sT2}, s{sW}, 20480
        ''')
        for ct in range(4):
            a(f'''
            v_xor_b32 v{t+12}, {ct}, v{t+10}
            v_lshl_add_u32 v{t+12}, v{t+12}, 5, v{t+11}
            v_add_u32 v{vA2+ct}, s{sT2}, v{t+12}
            ''')
        a(f'''
        v_xor_b32 v{t+12}, s{sW}, v{t+10}
        v_lshl_add_u32 v{t+12}, v{t+12}, 5, v{t+11}
        v_add_u32 v{vAr}, {ATL}, v{t+12}
        s_cmp_eq_u32 s{sW}, 3
        s_cselect_b32 s{sT2}, 0x7ff00000, 0
        v_add_u32 v{vHl}, s{sT2}, v{vUd}
        ''')
    def tphase(self):
        a = self.a; t = vT
        b = 56
        a(f'''
        v_and_b32 v{b}, 15, v{vL}                 ; i
        v_lshrrev_b32 v{b+1}, 4, v{vL}            ; g
        v_lshrrev_b32 v{b+2}, 2, v{b}             ; r
        v_and_b32 v{b+3}, 3, v{vL}                ; c
        v_lshrrev_b32 v{b+4}, 1, v{b+1}
        v_mul_u32_u24 v{b+4}, {KREG}, v{b+4}
        v_and_b32 v{b+5}, 1, v{b+1}
        v_lshl_add_u32 v{b+5}, v{b+5}, 3, v{b+2}
        v_lshl_add_u32 v{b+4}, v{b+5}, 7, v{b+4}
        v_lshl_add_u32 v{b+4}, v{b+3}, 3, v{b+4}
        s_lshl_b32 s{sT0}, s{sW}, 5
        s_add_u32 s{sT0}, s{sT0}, {S}
        v_add_u32 v{b+4}, s{sT0}, v{b+4}
        s_mul_i32 s{sT1}, s{sW}, {KREG}
        s_add_u32 s{sT1}, s{sT1}, {S+4096}
        v_mul_u32_u24 v{b+5}, 144, v{b}
        v_lshl_add_u32 v{b+5}, v{b+1}, 4, v{b+5}
        v_add_u32 v{b+5}, s{sT1}, v{b+5}
        v_lshrrev_b32 v{b+6}, 3, v{vL}
        v_and_b32 v{b+7}, 7, v{vL}
        v_mul_u32_u24 v{b+8}, 144, v{b+6}
        v_lshl_add_u32 v{b+8}, v{b+7}, 4, v{b+8}
        v_add_u32 v{b+8}, s{sT1}, v{b+8}
        v_mul_u32_u24 v{b+9}, {UROW}, v{b+6}
        v_lshl_add_u32 v{b+9}, v{b+7}, 4, v{b+9}
        v_cmp_eq_u32 s[{sM0}:{sM0+1}], 0, v{b+7}
        s_lshl_b32 s{sT0}, s{sCTT}, 6
        s_lshl_b32 s{sT1}, s{sW}, 4
        s_add_u32 s{sT0}, s{sT0}, s{sT1}
        s_mul_i32 s{sT0}, s{sT0}, {UROW}
        s_lshl_b32 s{sT1}, s{sJT}, 7
        s_add_u32 s{sT0}, s{sT0}, s{sT1}
        s_add_u32 s{sT0}, s{sT0}, 128
        ''')
        a.wait_vm('tt')
        a('s_barrier')
        u = 68
        for q in range(2):
            for hh in range(2):
                a.dsop(f'ds_read_b64_tr_b16 v[{u+4*q+2*hh}:{u+4*q+2*hh+1}], v{b+4} offset:{q*36864+hh*512}', 'ttr')
        a.wait_lg('ttr')
        for q in range(2):
            a.dsop(f'ds_write_b128 v{b+5}, v[{u+4*q}:{u+4*q+3}] offset:{64*q}', 'tw')
        a.wait_lg('tw')
        w = 76
        for hf in range(2):
            a.dsop(f'ds_read_b128 v[{w+4*hf}:{w+4*hf+3}], v{b+8} offset:{8*144*hf}', f'tb{hf}')
        a.wait_vm('tp')
        for hf in range(2):
            a.wait_lg(f'tb{hf}')
            d = w + 4*hf; o = 84 + 4*hf
            a(f's_add_u32 s{sT1}, s{sT0}, {UT0 + hf*8*UROW}')
            a.vmop(f'buffer_store_dwordx4 v[{d}:{d+3}], v{b+9}, s[{sWS}:{sWS+3}], s{sT1} offen sc1', 'ts')
            a(f'v_mov_b32_dpp v92, v{d+3} row_shr:1 row_mask:0xf bank_mask:0xf')
            a(f'v_cndmask_b32 v92, v92, v{54+hf}, s[{sM0}:{sM0+1}]')
            a(f'v_alignbit_b32 v{o}, v{d}, v92, 16')
            for k in range(1, 4): a(f'v_alignbit_b32 v{o+k}, v{d+k}, v{d+k-1}, 16')
            a(f's_add_u32 s{sT1}, s{sT0}, {UT1 + hf*8*UROW}')
            a.vmop(f'buffer_store_dwordx4 v[{o}:{o+3}], v{b+9}, s[{sWS}:{sWS+3}], s{sT1} offen sc1', 'ts')
        l = self.lab('TZ')
        a(f's_cmp_lg_u32 s{sJT}, 0\ns_cbranch_scc1 {l}')
        a(f's_mov_b64 exec, s[{sM0}:{sM0+1}]')
        for k in range(4): a(f'v_mov_b32 v{96+k}, 0')
        for ver in (UT0, UT1):
            for hf in range(2):
                a(f's_add_u32 s{sT1}, s{sT0}, {ver + hf*8*UROW - 16}')
                a(f'buffer_store_dwordx4 v[96:99], v{b+9}, s[{sWS}:{sWS+3}], s{sT1} offen sc1')
        a('s_mov_b64 exec, -1')
        a.label(l)
        a('s_barrier')
    def kgen(self):
        a = self.a
        kw = 54
        a(f'''
        s_mul_i32 s{sT0}, s{sW}, {KREG}
        s_add_u32 s{sT0}, s{sT0}, {S}
        v_lshl_add_u32 v{kw}, v{vL}, 2, s{sT0}
        s_mov_b32 s{sK}, 0x3fb8aa3b        ; log2(e)
        s_mov_b32 s{sK+1}, 0x32a57060
        s_mov_b32 s{sK+2}, 0x3e22f983      ; 1/(2pi)
        s_mov_b32 s{sK+3}, 0x3f317218      ; ln2
        ''')
        a.wait_vm('kp')
        for i in range(8): a(f'v_lshlrev_b32 v{46+i}, 16, v{46+i}')
        a(f'v_mov_b32 v{vDsk}, v53')
        a(f'''
        v_mul_f32 v56, s{sK}, v52
        v_fma_f32 v57, v52, s{sK}, -v56
        v_fma_f32 v57, v52, s{sK+1}, v57
        v_exp_f32 v56, v56
        v_mul_f32 v57, s{sK+3}, v57
        v_fma_f32 v56, v56, v57, v56
        v_cvt_pk_bf16_f32 v56, v56, v56
        v_lshlrev_b32 v56, 16, v56          ; dt
        v_mul_f32 v46, v56, v46             ; s_re
        v_mul_f32 v47, v56, v47             ; s_im
        v_mul_f32 v48, v56, v48
        v_mul_f32 v49, v56, v49
        v_mul_f32 v46, s{sK}, v46           ; e1
        v_mul_f32 v47, s{sK+2}, v47         ; th1
        ''')
        def cmul(d, x, y):
            a(f'v_pk_mul_f32 v[{d}:{d+1}], v[{x}:{x+1}], v[{y}:{y+1}] op_sel:[0,0] op_sel_hi:[0,1]')
            a(f'v_pk_fma_f32 v[{d}:{d+1}], v[{x}:{x+1}], v[{y}:{y+1}], v[{d}:{d+1}] op_sel:[1,1,0] op_sel_hi:[1,0,1] neg_lo:[1,0,0]')
        def cmul2(d1, x1, y1, d2, x2, y2):
            a(f'v_pk_mul_f32 v[{d1}:{d1+1}], v[{x1}:{x1+1}], v[{y1}:{y1+1}] op_sel:[0,0] op_sel_hi:[0,1]')
            a(f'v_pk_mul_f32 v[{d2}:{d2+1}], v[{x2}:{x2+1}], v[{y2}:{y2+1}] op_sel:[0,0] op_sel_hi:[0,1]')
            a(f'v_pk_fma_f32 v[{d1}:{d1+1}], v[{x1}:{x1+1}], v[{y1}:{y1+1}], v[{d1}:{d1+1}] op_sel:[1,1,0] op_sel_hi:[1,0,1] neg_lo:[1,0,0]')
            a(f'v_pk_fma_f32 v[{d2}:{d2+1}], v[{x2}:{x2+1}], v[{y2}:{y2+1}], v[{d2}:{d2+1}] op_sel:[1,1,0] op_sel_hi:[1,0,1] neg_lo:[1,0,0]')
        W = 58
        cmul(W, 50, 48)
        zs = [(60, 1.0), (62, 8.0), (64, 128.0)]
        tmp = 100
        for k, (z, sc) in enumerate(zs):
            e, th = tmp + 4*k, tmp + 4*k + 1
            if sc == 1.0:
                a(f'v_mov_b32 v{e}, v46\nv_fract_f32 v{th}, v47')
            else:
                c = '0x41000000' if sc == 8.0 else '0x43000000'
                a(f'v_mul_f32 v{e}, {c}, v46\nv_mul_f32 v{th}, {c}, v47\nv_fract_f32 v{th}, v{th}')
        for k in range(3): a(f'v_exp_f32 v{tmp+4*k}, v{tmp+4*k}')
        for k in range(3): a(f'v_cos_f32 v{tmp+4*k+2}, v{tmp+4*k+1}')
        for k in range(3): a(f'v_sin_f32 v{tmp+4*k+3}, v{tmp+4*k+1}')
        for k, (z, sc) in enumerate(zs):
            a(f'v_mul_f32 v{z}, v{tmp+4*k}, v{tmp+4*k+2}\nv_mul_f32 v{z+1}, v{tmp+4*k}, v{tmp+4*k+3}')
        self.kt = 0
        def emit(v, z, conj):
            r = 112 + (self.kt % 4); self.kt += 1
            a(f'v_cvt_pk_bf16_f32 v{r}, v{z}, {"-" if conj else ""}v{z+1}')
            a.dsop(f'ds_write_b32 v{kw}, v{r} offset:{v*288}', 'kv')
        Z1, Z8, Z128 = 60, 62, 64
        P = {1: 60, 2: 66, 3: 68, 4: 70, 5: 72, 6: 74, 7: 76}
        Q = {1: 62, 2: 78, 3: 80, 4: 82}
        a('v_mov_b32 v116, 0x3f80')
        a.dsop(f'ds_write_b32 v{kw}, v116 offset:{48*288}', 'kv')
        emit(0, W, True); emit(49, Z8, False)
        cmul2(P[2], Z1, Z1, Q[2], Z8, Z8)
        WQ = {0: W, 1: 84}
        cmul2(P[3], P[2], Z1, P[4], P[2], P[2])
        cmul2(Q[3], Q[2], Z8, Q[4], Q[2], Q[2])
        emit(50, Q[2], False)
        cmul2(P[5], P[4], Z1, P[6], P[4], P[2])
        emit(51, Q[3], False); emit(52, Q[4], False)
        cmul2(P[7], P[4], P[3], WQ[1], W, Z128)
        ring = {1: Q[1], 2: Q[2], 3: Q[3], 4: Q[4]}
        cols = []
        for j in range(5, 16):
            cols.append(j)
        R0, R1 = 86, 88
        rows_todo = []
        for e in range(8): rows_todo.append((e, 0, e))
        for e in range(8): rows_todo.append((8+e, 1, e))
        for e in range(4): rows_todo.append((16+e, 2, 2*e))
        for e in range(4): rows_todo.append((20+e, 3, 2*e))
        for h in range(4):
            for e in range(2): rows_todo.append((24+2*h+e, 4+h, 4*e))
        for h in range(8): rows_todo.append((32+h, 8+h, 0))
        rows_todo.append((40, 16, 0))
        wq = lambda h: W if h == 0 else (84 if h == 1 else 90 + 2*(h % 3))
        have = 1
        colq = list(cols)
        def colreg(j): return ring[j] if j in ring else None
        def next_col():
            if not colq: return None
            j = colq.pop(0)
            d = 118 + 2*((j-5) % 5)
            src = ring[j-4]
            ring[j] = d
            return (j, d, src, Q[4])
        pending = [r for r in rows_todo if r[0] != 0]
        while pending or colq:
            jobs = []
            if pending:
                v, h, e = pending[0]
                while have < h:
                    c = next_col()
                    if c:
                        cmul2(wq(have+1), wq(have), Z128, c[1], c[2], c[3]); have += 1
                        emit(48 + c[0], c[1], False)
                    else:
                        cmul(wq(have+1), wq(have), Z128); have += 1
                if e == 0:
                    pending.pop(0); emit(v, wq(h), True); continue
                if len(pending) > 1 and pending[1][1] == h and pending[1][2] != 0:
                    v2, h2, e2 = pending[1]
                    cmul2(R0, wq(h), P[e], R1, wq(h), P[e2]); pending = pending[2:]
                    emit(v, R0, True); emit(v2, R1, True)
                else:
                    c = next_col()
                    if c:
                        cmul2(R0, wq(h), P[e], c[1], c[2], c[3]); emit(48 + c[0], c[1], False)
                    else: cmul(R0, wq(h), P[e])
                    pending.pop(0); emit(v, R0, True)
            else:
                c = next_col(); cmul(c[1], c[2], c[3]); emit(48 + c[0], c[1], False)
        t = 100
        a(f'''
        v_and_b32 v{t}, 15, v{vL}
        v_lshrrev_b32 v{t+1}, 4, v{vL}
        s_lshr_b32 s{sT0}, s{sW}, 1
        s_and_b32 s{sT1}, s{sW}, 1
        s_mul_i32 s{sT2}, s{sT0}, {2*KREG}
        s_add_u32 s{sT2}, s{sT2}, {S}
        v_mul_u32_u24 v{t+2}, 288, v{t}
        v_lshl_add_u32 v{t+2}, v{t+1}, 4, v{t+2}
        v_add_u32 v{t+2}, s{sT2}, v{t+2}
        v_add_u32 v{t+3}, {48*288}, v{t+2}        ; B address
        s_mul_i32 s{sT3}, s{sT1}, {16*288}
        v_add_u32 v{t+2}, s{sT3}, v{t+2}          ; A address
        s_mul_i32 s{sT2}, s{sT0}, 1536
        s_lshl_b32 s{sT3}, s{sT1}, 5
        s_add_u32 s{sT2}, s{sT2}, s{sT3}
        s_add_u32 s{sT2}, s{sT2}, {KT}
        v_mul_u32_u24 v{t+4}, 96, v{t}
        v_lshl_add_u32 v{t+4}, v{t+1}, 3, v{t+4}
        v_add_u32 v{t+4}, s{sT2}, v{t+4}
        ''')
        a.wait_lg_all(); a.wait_vm_all()
        a('s_barrier')
        self.publish(1)
        f = 128
        for ks8 in range(8):
            mh, ks = ks8 // 4, ks8 % 4
            off = mh*KREG + 64*ks
            a.dsop(f'ds_read_b128 v[{f+12*ks8}:{f+12*ks8+3}], v{t+3} offset:{off}', f'kf{ks8}')
            for tt in range(2):
                a.dsop(f'ds_read_b128 v[{f+12*ks8+4+4*tt}:{f+12*ks8+7+4*tt}], v{t+2} offset:{off+tt*16*288}', f'kf{ks8}')
        D = 112
        for ks8 in range(8):
            a.wait_lg(f'kf{ks8}')
            for tt in range(2):
                c = '0' if ks8 == 0 else f'v[{D+4*tt}:{D+4*tt+3}]'
                a(f'v_mfma_f32_16x16x32_bf16 v[{D+4*tt}:{D+4*tt+3}], v[{f+12*ks8+4+4*tt}:{f+12*ks8+7+4*tt}], v[{f+12*ks8}:{f+12*ks8+3}], {c}')
        for tt in range(2):
            a(f'v_cvt_pk_bf16_f32 v{120+2*tt}, v{D+4*tt}, v{D+4*tt+1}')
            a(f'v_cvt_pk_bf16_f32 v{121+2*tt}, v{D+4*tt+2}, v{D+4*tt+3}')
            a.dsop(f'ds_write_b64 v{t+4}, v[{120+2*tt}:{121+2*tt}] offset:{32*tt}', 'kt')
        e = 104
        a(f'''
        v_and_b32 v{e}, 15, v0
        v_mul_u32_u24 v{e}, 96, v{e}             ; j*96
        v_lshrrev_b32 v{e+1}, 4, v0              ; c>>4
        v_add_u32 v{e+2}, 1, v0
        v_and_b32 v{e+3}, 15, v{e+2}
        v_mul_u32_u24 v{e+3}, 96, v{e+3}         ; j'*96
        v_lshrrev_b32 v{e+2}, 4, v{e+2}          ; (c+1)>>4
        v_lshlrev_b32 v{e+4}, 4, v0
        v_add_u32 v{e+4}, {KIMG + 240}, v{e+4}
        v_add_u32 v{e}, {KT}, v{e}
        v_add_u32 v{e+3}, {KT}, v{e+3}
        ''')
        a.wait_lg_all()
        a('s_barrier')
        l1, l2, l3 = self.lab('EX1'), self.lab('EX2'), self.lab('EXD')
        a(f's_cmp_eq_u32 s{sW}, 1\ns_cbranch_scc1 {l1}\ns_cmp_ge_u32 s{sW}, 2\ns_cbranch_scc1 {l2}')
        snap = a.snapshot()
        x = 128
        a(f'''
        v_lshl_add_u32 v{e+5}, v{e+1}, 4, v{e}            ; P0: j*96 + 16h
        v_lshl_add_u32 v{e+6}, v{e+1}, 3, v{e}            ; P1: j*96 + 32 + 8(h-2) = j*96 + 16 + 8*(c>>4)
        v_lshl_add_u32 v{e+7}, v{e+2}, 3, v{e+3}          ; next: j'*96 + 2*(16+4*(h'-2)) = j'*96 + 16 + 8*((c+1)>>4)
        s_mov_b32 s{sK}, 0x07060100
        ''')
        for ch in range(2):
            o = x + 16*ch
            a.dsop(f'ds_read_b128 v[{o}:{o+3}], v{e+5} offset:{1536*ch}', 'e')
            a.dsop(f'ds_read_b64 v[{o+4}:{o+5}], v{e+6} offset:{1536*ch+16}', 'e')
            a.dsop(f'ds_read_u16 v{o+6}, v{e+7} offset:{1536*ch+16}', 'e')
        a.wait_lg_all()
        for ch in range(2):
            o = x + 16*ch; d = o + 8
            a('s_mov_b32 exec_lo, -1\ns_mov_b32 exec_hi, 0')
            for k in range(4): a(f'v_alignbit_b32 v{d+k}, v{o+3-k}, v{o+3-k}, 16')
            a('s_mov_b32 exec_lo, 0\ns_mov_b32 exec_hi, -1')
            a(f'v_perm_b32 v{d}, v{o+5}, v{o+6}, s{sK}')
            a(f's_mov_b32 s{sK+1}, 0x05040504\nv_perm_b32 v{d+1}, v{o+5}, v{o+5}, s{sK+1}')
            a(f's_mov_b32 s{sK+2}, 0x07060100\nv_perm_b32 v{d+2}, v{o+4}, v{o+5}, s{sK+2}')
            a(f'v_perm_b32 v{d+3}, v{o+4}, v{o+4}, s{sK+1}')
            a('s_mov_b64 exec, -1')
            a.dsop(f'ds_write_b128 v{e+4}, v[{d}:{d+3}] offset:{KIMGC*ch}', 'e')
        a.wait_lg_all()
        a(f's_branch {l3}')
        a.restore(snap); a.label(l1)
        a(f'''
        v_lshl_add_u32 v{e+5}, v{e+1}, 2, v{e}
        v_lshl_add_u32 v{e+7}, v{e+2}, 2, v{e+3}
        s_mov_b32 s{sK}, 0x01000100
        s_mov_b32 s{sK+1}, 0x03020302
        s_mov_b32 s{sK+2}, 0x01000302
        ''')
        for ch in range(2):
            o = x + 16*ch
            a.dsop(f'ds_read_b32 v{o}, v{e+5} offset:{1536*ch+32}', 'e')
            a.dsop(f'ds_read_u16 v{o+1}, v{e+7} offset:{1536*ch+32}', 'e')
        a.wait_lg_all()
        for ch in range(2):
            o = x + 16*ch; d = o + 8
            a(f'v_perm_b32 v{d}, v{o+1}, v{o+1}, s{sK}')
            a(f'v_perm_b32 v{d+1}, v{o}, v{o}, s{sK+1}')
            a(f'v_perm_b32 v{d+2}, v{o}, v{o}, s{sK+2}')
            a(f'v_perm_b32 v{d+3}, v{o}, v{o}, s{sK}')
            a.dsop(f'ds_write_b128 v{e+4}, v[{d}:{d+3}] offset:{KIMGC*ch}', 'e')
        a.wait_lg_all()
        a(f's_branch {l3}')
        a.restore(snap); a.label(l2)
        a(f'''
        v_lshl_add_u32 v{e+5}, v{e+1}, 1, v{e}
        v_lshl_add_u32 v{e+7}, v{e+2}, 1, v{e+3}
        s_mov_b32 s{sK}, 0x01000100
        s_mov_b32 s{sK+1}, 0x05040100
        v_and_b32 v{e+6}, 1, v0
        v_cmp_eq_u32 vcc, 0, v{e+6}
        ''')
        for ch in range(2):
            o = x + 16*ch
            a.dsop(f'ds_read_u16 v{o}, v{e+5} offset:{1536*ch+48}', 'e')
            a.dsop(f'ds_read_u16 v{o+1}, v{e+7} offset:{1536*ch+48}', 'e')
        a.wait_lg_all()
        for ch in range(2):
            o = x + 16*ch; d = o + 8
            a(f'v_cndmask_b32 v{o+2}, v{o+1}, v{o}, vcc')
            a(f'v_perm_b32 v{d}, v{o+1}, v{o+1}, s{sK}')
            a(f'v_perm_b32 v{d+1}, v{o+2}, v{o+1}, s{sK+1}')
            a(f'v_perm_b32 v{d+2}, v{o}, v{o}, s{sK}')
            a(f'v_mov_b32 v{d+3}, v{d+2}')
            a.dsop(f'ds_write_b128 v{e+4}, v[{d}:{d+3}] offset:{KIMGC*ch}', 'e')
        a(f'''
        v_lshlrev_b32 v{e+6}, 4, v{vL}
        v_add_u32 v{e+6}, {KIMG}, v{e+6}
        v_mov_b32 v{x}, 0
        v_mov_b32 v{x+1}, 0
        v_mov_b32 v{x+2}, 0
        v_mov_b32 v{x+3}, 0
        s_mov_b64 exec, 0x7fff
        ''')
        for ch in range(2):
            a.dsop(f'ds_write_b128 v{e+6}, v[{x}:{x+3}] offset:{KIMGC*ch}', 'e')
        a('s_mov_b64 exec, -1')
        a.wait_lg_all()
        a.label(l3)
        a.hist = []
    def ucopy_dma(self):
        a = self.a
        a(f'''
        s_lshr_b32 s{sT0}, s{sW}, 1
        s_and_b32 s{sT1}, s{sW}, 1
        s_add_u32 s{sT2}, s{sT0}, s{sCH}
        s_mul_i32 s{sT2}, s{sT2}, {UROW}
        s_add_u32 s{sT2}, s{sT2}, 128
        s_mul_i32 s{sT3}, s{sT0}, {8*COPY}
        s_mul_i32 s{sT1}, s{sT1}, {4*COPY}
        s_add_u32 s{sT3}, s{sT3}, s{sT1}
        s_add_u32 s{sT3}, s{sT3}, {S}
        s_and_b32 s{sT1}, s{sW}, 1
        s_lshl_b32 s{sT1}, s{sT1}, 3
        s_add_u32 s{sT2}, s{sT2}, s{sT1}
        ''')
        for rr in range(4):
            base = (UT0 + 2*(rr-7)) if rr & 1 else (UT1 + 2*(rr-6))
            for i in range(4):
                a(f's_add_u32 m0, s{sT3}, {rr*COPY + 1024*i}')
                off = base + 1024*i
                if off >= 0: a(f's_add_u32 s{sT1}, s{sT2}, {off}')
                else: a(f's_sub_u32 s{sT1}, s{sT2}, {-off}')
                a.vmop(f'buffer_load_dwordx4 v{vUd}, s[{sWS}:{sWS+3}], s{sT1} offen sc1 lds', 'uc')
    def gemm1(self, gate):
        a = self.a
        ACC = 32
        F = [80, 112]
        GW = 144
        nt = 1 if gate else 6
        acc = lambda t, rs: ACC + 8*t + 4*rs
        if gate:
            a(f'v_lshrrev_b32 v208, 4, v{vL}\nv_lshlrev_b32 v208, 4, v208')
            for ks in range(16):
                a.vmop(f'global_load_dwordx4 v[{GW+4*ks}:{GW+4*ks+3}], v208, s[28:29] offset:{64*ks}', 'gw')
        def reads(st, ks, fs):
            slot = st % 3; f = F[fs]; L = []
            vx = vXr0 + ks
            for rs in range(2):
                L.append((f'ds_read_b128 v[{f+4*rs}:{f+4*rs+3}], v{vx} offset:{XS+slot*16384+rs*2048}', f'x{fs}_{rs}'))
            if not gate:
                for t in range(6):
                    va = vWe if t % 2 == 0 else vWo
                    for hh in range(2):
                        off = slot*12288 + (32*ks + 4*hh)*192 + 32*t
                        L.append((f'ds_read_b64_tr_b16 v[{f+8+4*t+2*hh}:{f+8+4*t+2*hh+1}], v{va} offset:{off}', f'w{fs}_{t}'))
            return L
        def mfmas(st, ks, fs, side, first):
            f = F[fs]; side = list(side); n = 0
            for t in range(nt):
                for rs in range(2):
                    a.wait_lg([f'x{fs}_{rs}', f'w{fs}_{t}'])
                    c = '0' if first else f'v[{acc(t,rs)}:{acc(t,rs)+3}]'
                    A_ = f'v[{GW+4*(2*st+ks)}:{GW+4*(2*st+ks)+3}]' if gate else f'v[{f+8+4*t}:{f+11+4*t}]'
                    a(f'v_mfma_f32_16x16x32_bf16 v[{acc(t,rs)}:{acc(t,rs)+3}], {A_}, v[{f+4*rs}:{f+4*rs+3}], {c}')
                    k = 2 if n < 4 else 1
                    for _ in range(k):
                        if side: side.pop(0)()
                    n += 1
            while side: side.pop(0)()
        dsf = lambda x: (lambda: a.dsop(x[0], x[1]))
        for x in reads(0, 0, 0): a.dsop(*x)
        if gate: a.wait_vm('gw')
        for st in range(8):
            mfmas(st, 0, 0, [dsf(x) for x in reads(st, 1, 1)], st == 0)
            if st < 7:
                a.wait_lg_all()
                a.wait_vm(f'g1_{st+1}')
                if st == 6: self.tcheck = True
                a('s_barrier')
                if st == 0:
                    l = self.lab('ZA')
                    a(f's_cmp_lg_u32 s{sW}, 0\ns_cbranch_scc1 {l}')
                    a(f'v_lshlrev_b32 v209, 3, v{vL}\nv_add_u32 v209, {KT}, v209\nv_mov_b32 v210, 0\nv_mov_b32 v211, 0')
                    a(f'ds_write_b64 v209, v[210:211]\ns_waitcnt lgkmcnt(0)')
                    a.label(l)
                if st + 3 <= 7: self.g1_dma(st+3, not gate)
                if st == 2: self.poll_issue(vFT, 'pT')
                if st == 4:
                    self.poll_check(vFT, 1, 'pT')
                    self.ucopy_dma()
                mfmas(st, 1, 1, [dsf(x) for x in reads(st+1, 0, 0)], False)
            else:
                mfmas(st, 1, 1, [], False)
        a.wait_vm('uc')
        if not gate:
            a(f'''
            s_lshl_b32 s{sT0}, s{sR}, 3
            s_lshl_b32 s{sT1}, s{sW}, 1
            s_add_u32 s{sT0}, s{sT0}, s{sT1}
            s_mul_i32 s{sT0}, s{sT0}, 43
            s_mul_i32 s{sT1}, s{sC}, 3
            s_add_u32 s{sT0}, s{sT0}, s{sT1}
            s_lshl_b32 s{sT0}, s{sT0}, 10
            ''')
            l = self.lab('HS')
            for Gp in range(3):
                if Gp == 1: a(f's_cmp_eq_u32 s{sC}, 14\ns_cbranch_scc1 {l}')
                for rs in range(2):
                    o = 144 + 4*((Gp*2+rs) % 4)
                    for tt in range(2):
                        b = acc(2*Gp+tt, rs)
                        a(f'v_cvt_pk_bf16_f32 v{o+2*tt}, v{b}, v{b+1}')
                        a(f'v_cvt_pk_bf16_f32 v{o+2*tt+1}, v{b+2}, v{b+3}')
                    for k in range(4): a(f'v_pk_max_i16 v{o+k}, v{o+k}, 0')
                    a(f's_add_u32 s{sT1}, s{sT0}, {(rs*43+Gp)*1024}')
                    a(f'buffer_store_dwordx4 v[{o}:{o+3}], v{vUd}, s[{sH}:{sH+3}], s{sT1} offen sc1')
            a.label(l)
        else:
            a(f'''
            s_mov_b32 s{sK}, 0xbfb8aa3b
            s_lshl_b32 s{sT0}, s{sR}, 7
            s_lshl_b32 s{sT1}, s{sW}, 5
            s_add_u32 s{sT0}, s{sT0}, s{sT1}
            s_lshl_b32 s{sT0}, s{sT0}, 2
            s_add_u32 s{sT0}, s{sT0}, {GG}
            v_lshlrev_b32 v212, 2, v{vL}
            ''')
            for rs in range(2):
                b = acc(0, rs); o = 214 + rs
                a(f'''
                v_cvt_pk_bf16_f32 v{o}, v{b}, v{b}
                v_lshlrev_b32 v{o}, 16, v{o}
                v_mul_f32 v{o}, s{sK}, v{o}
                v_exp_f32 v{o}, v{o}
                v_add_f32 v{o}, 1.0, v{o}
                v_rcp_f32 v{o}, v{o}
                v_cvt_pk_bf16_f32 v{o}, v{o}, v{o}
                v_lshlrev_b32 v{o}, 16, v{o}
                ''')
            a('s_mov_b64 exec, 0xffff')
            for rs in range(2):
                a(f's_add_u32 s{sT1}, s{sT0}, {64*rs}')
                a(f'buffer_store_dword v{214+rs}, v212, s[{sWS}:{sWS+3}], s{sT1} offen sc1')
            a('s_mov_b64 exec, -1')
    def gemm1_phase(self):
        a = self.a
        lg, le = self.lab('GATE'), self.lab('G1E')
        a(f's_cmp_eq_u32 s{sC}, 15\ns_cbranch_scc1 {lg}')
        snap = a.snapshot()
        self.gemm1(False)
        a(f's_branch {le}')
        a.restore(snap); a.label(lg)
        self.gemm1(True)
        a.label(le)
        a.merge('pre')
    def w2_dma(self, gl):
        a = self.a; slot = gl % 5
        a(f's_add_u32 s{sT0}, s{sT5}, {gl}\ns_min_u32 s{sT0}, s{sT0}, 42\ns_lshl_b32 s{sT0}, s{sT0}, 15\ns_add_u32 s{sT0}, s{sT0}, s{sT3}')
        for i in range(4):
            a(f's_add_u32 m0, s{sT4}, {slot*4096 + 1024*i}')
            a(f's_add_u32 s{sT1}, s{sT0}, {8192*i}')
            a.vmop(f'buffer_load_dwordx4 v{vW2d}, s[{sW2}:{sW2+3}], s{sT1} offen lds', f'w2_{gl}')
    def w2_reads(self, gl):
        slot = gl % 5; L = []
        for ct in range(4):
            for hh in range(2):
                r = 16*gl + 4*ct + 2*hh
                L.append((f'ds_read_b64_tr_b16 a[{r}:{r+1}], v{vA2+ct} offset:{slot*4096+2048*hh}', f'w2r_{gl}'))
        return L
    def h_load(self, rr, gl, dst):
        a = self.a
        vo = vHl if gl == 10 else vUd
        a(f's_add_u32 s{sT0}, s{sHo+rr}, {gl*1024}')
        a.vmop(f'buffer_load_dwordx4 v[{dst}:{dst+3}], v{vo}, s[{sH}:{sH+3}], s{sT0} offen sc1', f'h_{rr}_{gl}')
    def conv(self):
        a = self.a
        ACC = 40
        FS = [72, 136]
        self.hreg = lambda rr, gl: 72 + 4*(11*rr + gl)
        a(f'''
        s_mul_i32 s{sT4}, s{sW}, 20480
        s_mul_i32 s{sT5}, s{sW}, 11
        s_lshl_b32 s{sT3}, s{sCT}, 7
        ''')
        for rr in range(4):
            a(f'''
            s_add_u32 s{sT0}, s{sW}, {1+rr}
            s_and_b32 s{sT0}, s{sT0}, 3
            s_lshl_b32 s{sT1}, s{sRT}, 2
            s_add_u32 s{sT0}, s{sT0}, s{sT1}
            s_mul_i32 s{sT0}, s{sT0}, 43
            s_add_u32 s{sT0}, s{sT0}, s{sT5}
            s_lshl_b32 s{sHo+rr}, s{sT0}, 10
            ''')
        a('s_barrier')
        for gl in range(5): self.w2_dma(gl)
        def loads(c):
            fs = FS[c & 1]; L = []
            for k in range(8):
                L.append((f'ds_read_b128 v[{fs+4*k}:{fs+4*k+3}], v{vKr} offset:{64*(8*k+c)}', f'K{c}_{k}'))
                vu = vU0 if k == 0 else vUb
                L.append((f'ds_read_b128 v[{fs+32+4*k}:{fs+35+4*k}], v{vu} offset:{64*(8*k+3-c)}', f'U{c}_{k}'))
            return L
        dsf = lambda x: (lambda: a.dsop(x[0], x[1]))
        for x in loads(0): a.dsop(*x)
        first = set()
        for c in range(4):
            fs = FS[c & 1]
            side = []
            if c < 3: side += [dsf(x) for x in loads(c+1)]
            extra = []
            def w2stage(gls, nxt):
                L = [lambda: a.wait_vm([f'w2_{g}' for g in gls])]
                for g in gls: L += [dsf(x) for x in self.w2_reads(g)]
                L.append(lambda: a.wait_lg([f'w2r_{g}' for g in gls]))
                for g in nxt: L.append(lambda g=g: self.w2_dma(g))
                return L
            def pubH():
                a.wait_vm('pre'); a('s_barrier'); self.publish(2)
            if c == 1: extra = [pubH] + w2stage([0, 1], [5, 6])
            if c == 2: extra = w2stage([2, 3, 4], [7, 8, 9]) + [lambda: self.poll_issue(vFH, 'pH')]
            if c == 3:
                extra = w2stage([5], [10]) + w2stage([6], [])
                extra += [lambda: self.poll_check(vFH, 2, 'pH')]
                extra += [(lambda gl=gl: self.h_load(0, gl, self.hreg(0, gl))) for gl in range(11)]
            side = side + extra
            pairs = []
            for s in range(8):
                for o in range(s+1):
                    for (ka, ub) in ({(s, o), (o, s)}):
                        if ka + ub <= 7: pairs.append((ka, ub))
            assert len(pairs) == 36
            per = -(-len(side) // 34)
            for n, (ka, ub) in enumerate(pairs):
                tau = ka + ub
                a.wait_lg([f'K{c}_{ka}', f'U{c}_{ub}'])
                cc = f'v[{ACC+4*tau}:{ACC+4*tau+3}]' if tau in first else '0'
                first.add(tau)
                a(f'v_mfma_f32_16x16x32_bf16 v[{ACC+4*tau}:{ACC+4*tau+3}], v[{fs+32+4*ub}:{fs+35+4*ub}], v[{fs+4*ka}:{fs+4*ka+3}], {cc}')
                for _ in range(per):
                    if side: side.pop(0)()
            while side: side.pop(0)()
        for k in range(4):
            a.dsop(f'ds_read_b64 v[{248+2*k}:{249+2*k}], v{vDs} offset:{512*k}', 'us')
        a.wait_lg_all()
        a('s_barrier')
        a(f'''
        s_and_b32 s{sT1}, s{sW}, 1
        s_lshl_b32 s{sT0}, s{sW}, 12
        s_add_u32 s{sT0}, s{sT0}, {XCH}
        v_add_u32 v2, s{sT0}, v{vUd}
        s_xor_b32 s{sT0}, s{sW}, 1
        s_lshl_b32 s{sT0}, s{sT0}, 12
        s_add_u32 s{sT0}, s{sT0}, {XCH}
        v_add_u32 v3, s{sT0}, v{vUd}
        s_cmp_eq_u32 s{sT1}, 0
        ''')
        l1, l2 = self.lab('XA'), self.lab('XB')
        a(f's_cbranch_scc0 {l1}')
        for k in range(4): a(f'ds_write_b128 v2, v[{ACC+16+4*k}:{ACC+19+4*k}] offset:{1024*k}')
        a(f's_branch {l2}')
        a.label(l1)
        for k in range(4): a(f'ds_write_b128 v2, v[{ACC+4*k}:{ACC+3+4*k}] offset:{1024*k}')
        for k in range(16): a(f'v_mov_b32 v{ACC+k}, v{ACC+16+k}')
        a.label(l2); a.hist = []
        a('s_waitcnt lgkmcnt(0)\ns_barrier')
        X = ACC + 16
        for k in range(4): a.dsop(f'ds_read_b128 v[{X+4*k}:{X+4*k+3}], v3 offset:{1024*k}', f'xr{k}')
        a(f'''
        s_lshr_b32 s{sT0}, s{sW}, 1
        s_add_u32 s{sT0}, s{sT0}, s{sCH}
        s_lshl_b32 s{sT0}, s{sT0}, 12
        s_lshl_b32 s{sT1}, s{sT1}, 11
        s_add_u32 s{sT0}, s{sT0}, s{sT1}
        s_add_u32 s{sT0}, s{sT0}, {AT}
        v_lshrrev_b32 v4, 4, v{vL}
        v_and_b32 v5, 1, v4
        v_lshrrev_b32 v4, 1, v4
        v_lshlrev_b32 v4, 8, v4
        v_lshl_add_u32 v4, v5, 9, v4
        v_and_b32 v5, 15, v{vL}
        v_lshl_add_u32 v4, v5, 4, v4
        s_mov_b32 s{sK}, 0xffff0000
        ''')
        P = [6, 8]
        res = {}
        for k in range(4):
            a.wait_lg(f'xr{k}')
            y = ACC + 4*k; x = X + 4*k; u = 248 + 2*k
            a(f'v_pk_add_f32 v[{y}:{y+1}], v[{y}:{y+1}], v[{x}:{x+1}]')
            a(f'v_pk_add_f32 v[{y+2}:{y+3}], v[{y+2}:{y+3}], v[{x+2}:{x+3}]')
            a(f'v_cvt_pk_bf16_f32 v{y}, v{y}, v{y+1}\nv_cvt_pk_bf16_f32 v{y+2}, v{y+2}, v{y+3}')
            a(f'v_and_b32 v{y+1}, s{sK}, v{y}\nv_and_b32 v{y+3}, s{sK}, v{y+2}')
            a(f'v_lshlrev_b32 v{y}, 16, v{y}\nv_lshlrev_b32 v{y+2}, 16, v{y+2}')
            a(f'v_lshlrev_b32 v{x}, 16, v{u}\nv_and_b32 v{x+1}, s{sK}, v{u}')
            a(f'v_lshlrev_b32 v{x+2}, 16, v{u+1}\nv_and_b32 v{x+3}, s{sK}, v{u+1}')
            for i in range(4): a(f'v_mul_f32 v{x+i}, v{vDsk}, v{x+i}')
            a(f'v_cvt_pk_bf16_f32 v{x}, v{x}, v{x+1}\nv_cvt_pk_bf16_f32 v{x+2}, v{x+2}, v{x+3}')
            a(f'v_and_b32 v{x+1}, s{sK}, v{x}\nv_and_b32 v{x+3}, s{sK}, v{x+2}')
            a(f'v_lshlrev_b32 v{x}, 16, v{x}\nv_lshlrev_b32 v{x+2}, 16, v{x+2}')
            a(f'v_pk_add_f32 v[{y}:{y+1}], v[{y}:{y+1}], v[{x}:{x+1}]')
            a(f'v_pk_add_f32 v[{y+2}:{y+3}], v[{y+2}:{y+3}], v[{x+2}:{x+3}]')
        for p in range(2):
            k = 2*p; o = X + 4*p
            ya, yb = ACC + 4*k, ACC + 4*(k+1)
            a(f'v_cvt_pk_bf16_f32 v{o}, v{ya}, v{ya+1}\nv_cvt_pk_bf16_f32 v{o+1}, v{ya+2}, v{ya+3}')
            a(f'v_cvt_pk_bf16_f32 v{o+2}, v{yb}, v{yb+1}\nv_cvt_pk_bf16_f32 v{o+3}, v{yb+2}, v{yb+3}')
            a(f'v_permlane16_swap_b32 v{o}, v{o+2}')
            a(f'v_permlane16_swap_b32 v{o+1}, v{o+3}')
            a(f's_add_u32 s{sT1}, s{sT0}, {1024*p}')
            a.vmop(f'buffer_store_dwordx4 v[{o}:{o+3}], v4, s[{sWS}:{sWS+3}], s{sT1} offen sc1', 'as')
    def gemm2(self):
        a = self.a
        dsf = lambda x: (lambda: a.dsop(x[0], x[1]))
        for rr in range(1, 4):
            for gl in range(11): self.h_load(rr, gl, self.hreg(rr, gl))
        a.wait_vm(['w2_7', 'w2_8', 'w2_9', 'w2_10'])
        for g in (7, 8, 9, 10):
            for x in self.w2_reads(g): a.dsop(*x)
        a(f'''
        s_lshl_b32 s{sT0}, s{sRT}, 6
        s_lshl_b32 s{sT1}, s{sW}, 4
        s_add_u32 s{sT0}, s{sT0}, s{sT1}
        s_lshl_b32 s{sT0}, s{sT0}, 2
        s_add_u32 s{sT0}, s{sT0}, {GG}
        v_and_b32 v2, 15, v{vL}
        v_lshlrev_b32 v2, 2, v2
        ''')
        a.vmop(f'buffer_load_dword v3, v2, s[{sWS}:{sWS+3}], s{sT0} offen sc1', 'g')
        a(f'''
        s_add_u32 s{sT0}, s{sW}, 1
        v_add_u32 v5, {PBUF}, v{vUd}
        ''')
        accr = lambda rr, ct: (f'a[{176+16*rr+4*ct}:{179+16*rr+4*ct}]' if rr < 3 else f'v[{40+4*ct}:{43+4*ct}]')
        for rr in range(4):
            side = []
            if rr >= 1:
                def wr(rr=rr):
                    a(f's_add_u32 s{sT0}, s{sW}, {rr}\ns_and_b32 s{sT0}, s{sT0}, 3\ns_mul_i32 s{sT0}, s{sT0}, 12288\ns_add_u32 s{sT0}, s{sT0}, {PBUF + (rr-1)*4096}')
                    a(f'v_add_u32 v5, s{sT0}, v{vUd}')
                side.append(wr)
                for ct in range(4):
                    side.append(lambda ct=ct, rr=rr: a.dsop(f'ds_write_b128 v5, {accr(rr-1, ct)} offset:{1024*ct}', 'pw'))
            if rr == 1:
                def pubA():
                    a.wait_vm('as'); a('s_barrier'); self.publish(3)
                side.insert(0, pubA)
            if rr == 2: side.append(lambda: self.poll_issue(vFA, 'pA'))
            if rr == 3:
                def atile():
                    self.poll_check(vFA, 3, 'pA')
                    a(f'''
                    s_lshl_b32 s{sT0}, s{sCT}, 6
                    s_lshl_b32 s{sT1}, s{sW}, 4
                    s_add_u32 s{sT0}, s{sT0}, s{sT1}
                    s_lshl_b32 s{sT0}, s{sT0}, 12
                    s_lshl_b32 s{sT1}, s{sRT}, 7
                    s_add_u32 s{sT0}, s{sT0}, s{sT1}
                    s_add_u32 s{sT0}, s{sT0}, {AT}
                    s_lshl_b32 s{sT2}, s{sW}, 11
                    s_add_u32 s{sT2}, s{sT2}, {ATL}
                    ''')
                    for i in range(2):
                        a(f's_add_u32 m0, s{sT2}, {1024*i}\ns_add_u32 s{sT1}, s{sT0}, {8*4096*i}')
                        a.vmop(f'buffer_load_dwordx4 v{vAd}, s[{sWS}:{sWS+3}], s{sT1} offen sc1 lds', 'at')
                side.append(atile)
            n = 0
            for gl in range(11):
                a.wait_vm(f'h_{rr}_{gl}')
                a.wait_lg(f'w2r_{gl}')
                h = self.hreg(rr, gl)
                for ct in range(4):
                    c = '0' if gl == 0 else accr(rr, ct)
                    r = 16*gl + 4*ct
                    a(f'v_mfma_f32_16x16x32_bf16 {accr(rr, ct)}, a[{r}:{r+3}], v[{h}:{h+3}], {c}')
                    n += 1
                    if n >= 9 and side: side.pop(0)()
            while side: side.pop(0)()
        a.wait_vm('at'); a.wait_lg_all()
        a('s_barrier')
        B = 40
        a(f'''
        s_mul_i32 s{sT0}, s{sW}, 12288
        s_add_u32 s{sT0}, s{sT0}, {PBUF}
        v_add_u32 v5, s{sT0}, v{vUd}
        ''')
        T = 72
        for sl in range(3):
            for ct in range(4):
                a.dsop(f'ds_read_b128 v[{T+16*sl+4*ct}:{T+16*sl+4*ct+3}], v5 offset:{sl*4096+1024*ct}', f'pr{sl}')
        Aa = 120
        for ct in range(4):
            a.dsop(f'ds_read_b64_tr_b16 v[{Aa+2*ct}:{Aa+2*ct+1}], v{vAr} offset:{2048*ct}', 'ar')
        a.wait_vm('g')
        a(f'''
        s_mov_b32 s{sK}, 0xffff0000
        v_sub_f32 v4, 1.0, v3
        v_cvt_pk_bf16_f32 v4, v4, v4
        v_lshlrev_b32 v4, 16, v4              ; 1-g (bf16)
        v_mov_b32 v6, v3
        v_mov_b32 v7, v3
        v_mov_b32 v8, v4
        v_mov_b32 v9, v4
        ''')
        for sl in range(3):
            a.wait_lg(f'pr{sl}')
            for k in range(8):
                a(f'v_pk_add_f32 v[{B+2*k}:{B+2*k+1}], v[{B+2*k}:{B+2*k+1}], v[{T+16*sl+2*k}:{T+16*sl+2*k+1}]')
        a.wait_lg('ar')
        U = 128
        def rnd(r):
            a(f'v_cvt_pk_bf16_f32 v{r}, v{r}, v{r+1}\nv_cvt_pk_bf16_f32 v{r+2}, v{r+2}, v{r+3}')
            a(f'v_and_b32 v{r+1}, s{sK}, v{r}\nv_and_b32 v{r+3}, s{sK}, v{r+2}')
            a(f'v_lshlrev_b32 v{r}, 16, v{r}\nv_lshlrev_b32 v{r+2}, 16, v{r+2}')
        for ct in range(4):
            b = B + 4*ct; u = U + 4*ct; s_ = Aa + 2*ct
            a(f'v_lshlrev_b32 v{u}, 16, v{s_}\nv_and_b32 v{u+1}, s{sK}, v{s_}')
            a(f'v_lshlrev_b32 v{u+2}, 16, v{s_+1}\nv_and_b32 v{u+3}, s{sK}, v{s_+1}')
            rnd(b)
            a(f'v_pk_mul_f32 v[{u}:{u+1}], v[{u}:{u+1}], v[6:7]\nv_pk_mul_f32 v[{u+2}:{u+3}], v[{u+2}:{u+3}], v[6:7]')
            a(f'v_pk_mul_f32 v[{b}:{b+1}], v[{b}:{b+1}], v[8:9]\nv_pk_mul_f32 v[{b+2}:{b+3}], v[{b+2}:{b+3}], v[8:9]')
            rnd(u); rnd(b)
            a(f'v_pk_add_f32 v[{b}:{b+1}], v[{b}:{b+1}], v[{u}:{u+1}]\nv_pk_add_f32 v[{b+2}:{b+3}], v[{b+2}:{b+3}], v[{u+2}:{u+3}]')
            a(f'v_cvt_pk_bf16_f32 v{u}, v{b}, v{b+1}\nv_cvt_pk_bf16_f32 v{u+1}, v{b+2}, v{b+3}')
        a(f'''
        s_mul_i32 s{sT0}, s{sW}, 20480
        v_and_b32 v10, 15, v{vL}
        v_lshrrev_b32 v11, 4, v{vL}
        v_mul_u32_u24 v10, 144, v10
        v_lshl_add_u32 v10, v11, 3, v10
        v_add_u32 v10, s{sT0}, v10
        v_lshrrev_b32 v11, 3, v{vL}
        v_and_b32 v12, 7, v{vL}
        v_mul_u32_u24 v13, 144, v11
        v_lshl_add_u32 v13, v12, 4, v13
        v_add_u32 v13, s{sT0}, v13
        v_lshlrev_b32 v11, 10, v11
        v_lshl_add_u32 v11, v12, 4, v11
        s_lshl_b32 s{sT0}, s{sRT}, 6
        s_lshl_b32 s{sT1}, s{sW}, 4
        s_add_u32 s{sT0}, s{sT0}, s{sT1}
        s_lshl_b32 s{sT0}, s{sT0}, 10
        s_lshl_b32 s{sT1}, s{sCT}, 7
        s_add_u32 s{sT0}, s{sT0}, s{sT1}
        ''')
        for ct in range(4):
            a.dsop(f'ds_write_b64 v10, v[{U+4*ct}:{U+4*ct+1}] offset:{32*ct}', 'ow')
        a.wait_lg_all()
        for hf in range(2):
            a.dsop(f'ds_read_b128 v[{16+4*hf}:{19+4*hf}], v13 offset:{8*144*hf}', f'or{hf}')
        for hf in range(2):
            a.wait_lg(f'or{hf}')
            a(f's_add_u32 s{sT1}, s{sT0}, {8192*hf}')
            a.vmop(f'buffer_store_dwordx4 v[{16+4*hf}:{19+4*hf}], v11, s[{sOUT}:{sOUT+3}], s{sT1} offen', 'o')
    def finish(self):
        a = self.a
        if self.stamps:
            a('s_waitcnt vmcnt(0)')
            self.stamp()
            a(f's_memrealtime s[{sST}:{sST+1}]\ns_waitcnt lgkmcnt(0)\nv_writelane_b32 v31, s{sST}, 63')
            a(f'''
            s_lshl_b32 s{sT0}, s2, 2
            s_add_u32 s{sT0}, s{sT0}, s{sW}
            s_lshl_b32 s{sT0}, s{sT0}, 8
            s_add_u32 s{sT0}, s{sT0}, {STAMP}
            v_lshlrev_b32 v30, 2, v{vL}
            buffer_store_dword v31, v30, s[{sWS}:{sWS+3}], s{sT0} offen
            ''')
        a('s_waitcnt vmcnt(0)')
        a.label('END')
    def build(self):
        self.stamp0 = True
        self.prologue(); self.stamp()
        self.tphase(); self.stamp()
        self.kgen(); self.stamp()
        self.gemm1_phase(); self.stamp()
        self.conv(); self.stamp()
        self.gemm2(); self.stamp()
        self.finish()
        return self.a.text()

HEADER = open('gated_mix__ssm_conv_s4__dense_activation_relu__prompt.s.ref').read().split('; Override launch')[0]
def full(stamps=False):
    global NST
    g = G(stamps); body = g.build(); NST = g.nst
    return HEADER + f"""; Generated by my own generator script (work/gen.py); single fused launch, 256 workgroups, one per CU.
; @launch grid=(256,1,1) block=(256,1,1) lds=163840
.amdgcn_target "amdgcn-amd-amdhsa--gfx950"
.text
.globl {KNAME}
.p2align 8
.type {KNAME},@function
{KNAME}:
{body}s_endpgm
.section .rodata,"a"
.p2align 6
.amdhsa_kernel {KNAME}
  .amdhsa_next_free_vgpr 512
  .amdhsa_next_free_sgpr 102
  .amdhsa_accum_offset 256
  .amdhsa_group_segment_fixed_size 0
  .amdhsa_kernarg_size 128
  .amdhsa_user_sgpr_count 2
  .amdhsa_user_sgpr_kernarg_segment_ptr 1
  .amdhsa_system_sgpr_workgroup_id_x 1
.end_amdhsa_kernel
"""
if __name__ == '__main__':
    out = sys.argv[1] if len(sys.argv) > 1 else 'gated_mix__ssm_conv_s4__dense_activation_relu__prompt.s'
    open(out, 'w').write(full(len(sys.argv) > 2))
    print('written', out)
```

```python
import sys
from asmlib import A, vr
KNAME = 'gated_mix__ssm_conv_s4__dense_activation_relu__prompt_kernel'
DEBUG = False
S = 86016
XS, WSL = 0, 49152
KREG = 18432
KIMG = S + 66048
KIMGC = 4336
KT = S + 74752
COPY = 4128
PBUF = S
XCH = S + 49152
ATL = S + 65536
UT0, UT1, HF, AT, GG, STAMP, FLG = 0, 0x220000, 0x480000, 0xA00000, 0xC00000, 0xD00000, 0xE00000
UROW = 4224
sX, sW1, sW2, sWS, sOUT, sDBG, sH = 36, 40, 44, 48, 52, 56, 60
sW, sXC, sJ, sR, sC, sJT, sCTT, sCH, sRT, sCT = 64, 65, 66, 67, 68, 69, 70, 71, 72, 73
sT0, sT1, sT2, sT3, sT4, sT5 = 74, 75, 76, 77, 78, 79
sXo, sWo = 80, 81
sHo = 82
sSP = 86
sEX = 88
sM0 = 90
sK = 92
sST = 96
sN = 98
vL = 1
vXd0, vXd1, vWd0, vWd1, vWd2 = 2, 3, 4, 5, 6
vXr0, vXr1, vWe, vWo = 7, 8, 9, 10
vFT, vFH, vFA = 11, 12, 13
vUd = 14
vU0, vUb, vKr, vDs = 15, 16, 17, 18
vW2d = 19
vA2 = 20
vDsk = 24
vFl = 208
vHl = 25
vAd, vAr = 28, 29
vT = 32

class G:
    def __init__(self, stamps=False):
        self.a = A(); self.stamps = stamps; self.nst = 0; self.nlab = 0
    def lab(self, p):
        self.nlab += 1; return f'{p}_{self.nlab}'
    def stamp(self, name='?'):
        if not self.stamps: return
        a = self.a
        if a.lg: a.wait_lg_all()
        if not hasattr(self, 'names'): self.names = []
        if self.nst < len(self.names) : pass
        self.names.append(name)
        a(f's_memtime s[{sST}:{sST+1}]\ns_waitcnt lgkmcnt(0)')
        a(f'v_writelane_b32 v31, s{sST}, {self.nst}')
        self.nst += 1
    def dma(self, voff, srd, soff, ldsaddr, tag, sc1=False, m0reg=None):
        a = self.a
        if m0reg is None: a(f's_mov_b32 m0, {ldsaddr}')
        else: a(f's_add_u32 m0, s{m0reg}, {ldsaddr}')
        return
    def poll_issue(self, vflag, tag, reg):
        self.a.vmop(f'buffer_load_dwordx2 v[{reg}:{reg+1}], v{vflag}, s[{sWS}:{sWS+3}], 0 offen sc1', tag)
    def poll_check(self, vflag, tag, reg):
        a = self.a
        a.wait_vm(tag)
        lo, done = self.lab('POLL'), self.lab('POLLD')
        a(f'v_cmp_ne_u64 vcc, s[{sN}:{sN+1}], v[{reg}:{reg+1}]')
        a(f's_cbranch_vccz {done}')
        a(f's_mov_b32 s{sSP}, 4000')
        a.label(lo)
        a(f's_sleep 2')
        a(f'buffer_load_dwordx2 v[{reg}:{reg+1}], v{vflag}, s[{sWS}:{sWS+3}], 0 offen sc1')
        a(f's_waitcnt vmcnt(0)')
        a(f'v_cmp_ne_u64 vcc, s[{sN}:{sN+1}], v[{reg}:{reg+1}]')
        a(f's_cbranch_vccz {done}')
        a(f's_sub_u32 s{sSP}, s{sSP}, 1')
        a(f's_cmp_lg_u32 s{sSP}, 0')
        a(f's_cbranch_scc1 {lo}')
        a.label(done)
    def nonce_issue(self):
        a = self.a
        a.vmop(f'buffer_load_dwordx2 v[26:27], off, s[{sDBG}:{sDBG+3}], 0 sc1', 'nonce')
    def nonce_get(self):
        a = self.a
        lo, done = self.lab('NON'), self.lab('NOND')
        a('v_cmp_eq_u64 vcc, 0, v[26:27]')
        a(f's_cbranch_vccz {done}')
        a(f's_mov_b32 s{sSP}, 4000')
        a.label(lo)
        a('s_sleep 2')
        a(f'buffer_load_dwordx2 v[26:27], off, s[{sDBG}:{sDBG+3}], 0 sc1')
        a('s_waitcnt vmcnt(0)')
        a('v_cmp_eq_u64 vcc, 0, v[26:27]')
        a(f's_cbranch_vccz {done}')
        a(f's_sub_u32 s{sSP}, s{sSP}, 1')
        a(f's_cmp_lg_u32 s{sSP}, 0')
        a(f's_cbranch_scc1 {lo}')
        a.label(done)
        a(f'v_readfirstlane_b32 s{sN}, v26')
        a(f'v_readfirstlane_b32 s{sN+1}, v27')
    def publish(self, phase, regs):
        a = self.a; l = self.lab('PUB'); r = regs
        a(f's_cmp_lg_u32 s{sW}, 0\ns_cbranch_scc1 {l}')
        a(f's_mov_b64 exec, 1')
        a(f'v_mov_b32 v{r}, s{sN}\nv_mov_b32 v{r+1}, s{sN+1}')
        a(f's_lshl_b32 s{sSP}, s2, 7\ns_add_u32 s{sSP}, s{sSP}, {FLG + phase*32768}')
        a(f'buffer_store_dwordx2 v[{r}:{r+1}], off, s[{sWS}:{sWS+3}], s{sSP} sc1')
        a(f's_mov_b64 exec, -1')
        a.label(l)
    def prologue(self):
        a = self.a
        a(f'''
        s_cmp_ge_u32 s2, 256
        s_cbranch_scc1 END
        ''')
        if self.stamps:
            a(f's_memrealtime s[{sST}:{sST+1}]\ns_waitcnt lgkmcnt(0)\nv_writelane_b32 v31, s{sST}, 62')
            self.stamp('start')
        a(f'''
        s_load_dwordx16 s[4:19], s[0:1], 0
        s_load_dwordx16 s[20:35], s[0:1], 64
        v_and_b32 v{vL}, 63, v0
        v_lshrrev_b32 v{vT}, 6, v0
        s_and_b32 s{sXC}, s2, 7
        v_readfirstlane_b32 s{sW}, v{vT}
        s_lshr_b32 s{sJ}, s2, 3
        s_lshr_b32 s{sT0}, s{sXC}, 1
        s_and_b32 s{sT1}, s{sXC}, 1
        s_and_b32 s{sT2}, s{sJ}, 3
        s_lshl_b32 s{sR}, s{sT0}, 2
        s_add_u32 s{sR}, s{sR}, s{sT2}
        s_lshr_b32 s{sCT}, s{sJ}, 2
        s_lshl_b32 s{sC}, s{sT1}, 3
        s_add_u32 s{sC}, s{sC}, s{sCT}
        s_lshl_b32 s{sJT}, s{sT0}, 3
        s_and_b32 s{sT3}, s{sJ}, 7
        s_add_u32 s{sJT}, s{sJT}, s{sT3}
        s_lshl_b32 s{sCTT}, s{sT1}, 2
        s_lshr_b32 s{sT3}, s{sJ}, 3
        s_add_u32 s{sCTT}, s{sCTT}, s{sT3}
        s_lshl_b32 s{sCH}, s{sXC}, 6
        s_lshl_b32 s{sT3}, s{sJ}, 1
        s_add_u32 s{sCH}, s{sCH}, s{sT3}
        s_lshl_b32 s{sRT}, s{sXC}, 2
        s_add_u32 s{sRT}, s{sRT}, s{sT2}
        ''')
        t = vT
        a(f'''
        v_lshrrev_b32 v{t}, 3, v{vL}          ; l>>3
        v_and_b32 v{t+1}, 7, v{vL}            ; l&7
        v_lshrrev_b32 v{t+2}, 4, v{vL}        ; g = l>>4
        v_lshlrev_b32 v{t+3}, 10, v{t}        ; (l>>3)*1024
        v_lshl_add_u32 v{t+4}, v{t+1}, 4, v{t+3}
        v_xor_b32 v{t+5}, v{t+1}, v{t+2}
        v_lshl_add_u32 v{vXd0}, v{t+5}, 4, v{t+3}
        v_xor_b32 v{t+5}, 4, v{t+5}
        v_lshl_add_u32 v{vXd1}, v{t+5}, 4, v{t+3}
        v_lshlrev_b32 v{vUd}, 4, v{vL}
        ''')
        a(f's_cmp_ge_u32 s{sC}, 14\ns_cselect_b32 s{sT4}, 3, 15')
        for ii in range(3):
            a(f'''
            v_add_u32 v{t+5}, {64*ii}, v{vL}
            v_mul_u32_u24 v{t+6}, 0x5556, v{t+5}
            v_lshrrev_b32 v{t+6}, 18, v{t+6}       ; k = q/12
            v_mul_u32_u24 v{t+7}, 12, v{t+6}
            v_sub_u32 v{t+7}, v{t+5}, v{t+7}       ; p
            v_lshrrev_b32 v{t+8}, 3, v{t+6}
            v_lshlrev_b32 v{t+8}, 1, v{t+8}        ; 2*bit
            v_xor_b32 v{t+7}, v{t+7}, v{t+8}
            v_and_b32 v{t+7}, s{sT4}, v{t+7}
            v_mul_u32_u24 v{t+6}, 0xac0, v{t+6}    ; k*2752
            v_lshl_add_u32 v{vWd0+ii}, v{t+7}, 4, v{t+6}
            ''')
        a('s_waitcnt lgkmcnt(0)')
        def srd(s, p, n, off=0):
            if off: a(f's_add_u32 s{s}, s{p}, {off}\ns_addc_u32 s{s+1}, s{p+1}, 0')
            else: a(f's_mov_b32 s{s}, s{p}\ns_mov_b32 s{s+1}, s{p+1}')
            a(f's_mov_b32 s{s+2}, {n}\ns_mov_b32 s{s+3}, 0x20000')
        srd(sX, 4, 2097152)
        srd(sDBG, 32, 256)
        ln = self.lab('NW')
        a(f's_cmp_lg_u32 s2, 0\ns_cbranch_scc1 {ln}\ns_cmp_lg_u32 s{sW}, 0\ns_cbranch_scc1 {ln}')
        a(f's_memrealtime s[{sN}:{sN+1}]\ns_waitcnt lgkmcnt(0)')
        a(f's_or_b32 s{sN}, s{sN}, 1')
        a(f'v_mov_b32 v26, s{sN}\nv_mov_b32 v27, s{sN+1}\ns_mov_b64 exec, 1')
        a(f'buffer_store_dwordx2 v[26:27], off, s[{sDBG}:{sDBG+3}], 0 sc1')
        a('s_mov_b64 exec, -1')
        a.label(ln)
        a(f'''
        s_lshl_b32 s{sT0}, s{sJT}, 6
        s_lshl_b32 s{sT1}, s{sW}, 4
        s_add_u32 s{sT0}, s{sT0}, s{sT1}          ; 64jt+16w
        s_lshl_b32 s{sT0}, s{sT0}, 10
        s_lshl_b32 s{sT2}, s{sCTT}, 7
        s_add_u32 s{sT0}, s{sT0}, s{sT2}
        s_mul_i32 s{sT3}, s{sW}, {KREG}
        s_add_u32 s{sT3}, s{sT3}, {S}
        s_mov_b32 m0, s{sT3}
        s_add_u32 s{sT1}, s{sT0}, 8192
        ''')
        a.vmop(f'buffer_load_dwordx4 v{t+4}, s[{sX}:{sX+3}], s{sT0} offen lds', 'tt')
        a(f's_add_u32 m0, s{sT3}, 1024\ns_nop 0')
        a.vmop(f'buffer_load_dwordx4 v{t+4}, s[{sX}:{sX+3}], s{sT1} offen lds', 'tt')
        a(f'''
        s_lshl_b32 s{sT0}, s{sJT}, 16
        s_sub_u32 s{sT0}, s{sT0}, 1024
        s_add_u32 s{sT0}, s{sT0}, s{sT2}
        s_lshl_b32 s{sT1}, s{sW}, 5
        s_add_u32 s{sT0}, s{sT0}, s{sT1}
        v_lshl_add_u32 v{t+5}, v{t}, 1, s{sT0}
        v_add_u32 v{t+6}, 16, v{t+5}
        ''')
        a.vmop(f'buffer_load_short_d16_hi v54, v{t+5}, s[{sX}:{sX+3}], 0 offen', 'tp')
        a.vmop(f'buffer_load_short_d16_hi v55, v{t+6}, s[{sX}:{sX+3}], 0 offen', 'tp')
        a(f'''
        s_lshr_b32 s{sT0}, s{sW}, 1
        s_add_u32 s{sT0}, s{sT0}, s{sCH}          ; channel
        s_and_b32 s{sT1}, s{sW}, 1
        s_lshl_b32 s{sT2}, s{sT0}, 8
        s_lshl_b32 s{sT1}, s{sT1}, 7
        s_add_u32 s{sT2}, s{sT2}, s{sT1}
        v_lshl_add_u32 v{t+5}, v{vL}, 1, s{sT2}
        s_lshl_b32 s{sT0}, s{sT0}, 1
        v_mov_b32 v{t+6}, s{sT0}
        ''')
        for i in range(6):
            a.vmop(f'global_load_ushort v{46+i}, v{t+5}, s[{6+2*i}:{7+2*i}]', 'kp')
        a.vmop(f'global_load_ushort v52, v{t+6}, s[18:19]', 'kp')
        a.vmop(f'global_load_ushort v53, v{t+6}, s[20:21]', 'kp')
        srd(sW1, 24, 1409024)
        a(f'''
        s_lshl_b32 s{sT0}, s{sR}, 7
        s_lshl_b32 s{sT1}, s{sW}, 5
        s_add_u32 s{sT0}, s{sT0}, s{sT1}
        s_lshl_b32 s{sXo}, s{sT0}, 10             ; (128R+32w)*1024
        s_min_u32 s{sT0}, s{sC}, 14
        s_mul_i32 s{sT0}, s{sT0}, 192
        s_mul_i32 s{sT1}, s{sW}, {16*2752}
        s_add_u32 s{sWo}, s{sT0}, s{sT1}
        s_lshl_b32 s{sT4}, s{sW}, 12
        s_mul_i32 s{sT5}, s{sW}, 3072
        s_add_u32 s{sT5}, s{sT5}, {WSL}
        ''')
        for st in range(3): self.g1_dma(st, True)
        srd(sW2, 26, 1409024)
        srd(sWS, 34, 0x1000000)
        srd(sOUT, 30, 2097152)
        srd(sH, 34, 5636096, HF)
        self.nonce_issue()
        self.addr_calcs()
    def g1_dma(self, st, w1=True):
        a = self.a; slot = st % 3
        for i in range(4):
            a(f's_add_u32 m0, s{sT4}, {XS + slot*16384 + 1024*i}')
            a(f's_add_u32 s{sT0}, s{sXo}, {8*i*1024 + st*128}')
            a.vmop(f'buffer_load_dwordx4 v{vXd0 + (i&1)}, s[{sX}:{sX+3}], s{sT0} offen lds', f'g1_{st}')
        if w1:
            for ii in range(3):
                a(f's_add_u32 m0, s{sT5}, {slot*12288 + 1024*ii}')
                a(f's_add_u32 s{sT0}, s{sWo}, {st*64*2752}')
                a.vmop(f'buffer_load_dwordx4 v{vWd0+ii}, s[{sW1}:{sW1+3}], s{sT0} offen lds', f'g1_{st}')
    def addr_calcs(self):
        a = self.a; t = vT
        a(f'''
        v_and_b32 v{t+5}, 15, v{vL}              ; n
        v_lshrrev_b32 v{t+6}, 2, v{t+5}          ; r = n>>2
        v_and_b32 v{t+7}, 3, v{vL}               ; c
        v_and_b32 v{t+8}, 1, v{t+2}              ; g&1
        v_lshrrev_b32 v{t+9}, 1, v{t+2}          ; g>>1
        s_lshl_b32 s{sT0}, s{sW}, 12
        v_lshrrev_b32 v{t+10}, 1, v{t+5}
        v_xor_b32 v{t+10}, v{t+10}, v{t+2}       ; g ^ (n>>1)
        v_lshlrev_b32 v{t+11}, 7, v{t+5}
        v_add_u32 v{t+11}, s{sT0}, v{t+11}
        v_lshl_add_u32 v{vXr0}, v{t+10}, 4, v{t+11}
        v_xor_b32 v{t+10}, 4, v{t+10}
        v_lshl_add_u32 v{vXr1}, v{t+10}, 4, v{t+11}
        v_lshl_add_u32 v{t+10}, v{t+2}, 3, v{t+6}     ; 8g+r
        v_mul_u32_u24 v{t+10}, 192, v{t+10}
        v_lshl_add_u32 v{t+10}, v{t+7}, 3, v{t+10}
        v_add_u32 v{t+10}, {WSL}, v{t+10}
        v_lshlrev_b32 v{t+11}, 5, v{t+8}
        v_add_u32 v{vWe}, v{t+10}, v{t+11}
        v_sub_u32 v{vWo}, v{t+10}, v{t+11}
        v_and_b32 v{t+10}, 31, v{vL}
        v_lshrrev_b32 v{t+11}, 3, v{t+10}        ; q
        v_and_b32 v{t+12}, 7, v{t+10}            ; jj
        s_and_b32 s{sT0}, s{sXC}, 3
        s_lshl_b32 s{sT0}, s{sT0}, 6
        s_lshr_b32 s{sT1}, s{sXC}, 2
        s_add_u32 s{sT0}, s{sT0}, s{sT1}
        v_lshlrev_b32 v{t+12}, 3, v{t+12}
        v_lshl_add_u32 v{t+12}, v{t+11}, 1, v{t+12}
        v_add_u32 v{vFT}, s{sT0}, v{t+12}        ; 8*(8(xc&3)+jj)+2q+(xc>>2)
        v_lshl_add_u32 v{vFA}, v{t+10}, 3, s{sCT} ; 8*i + CT
        s_lshr_b32 s{sT0}, s{sRT}, 1
        s_lshr_b32 s{sT1}, s{sT0}, 2
        s_lshl_b32 s{sT1}, s{sT1}, 1
        s_and_b32 s{sT0}, s{sT0}, 3
        s_lshl_b32 s{sT0}, s{sT0}, 3
        s_add_u32 s{sT0}, s{sT0}, s{sT1}
        v_lshrrev_b32 v{t+11}, 3, v{t+5}         ; (i>>3) with i = l&15
        v_and_b32 v{t+12}, 7, v{t+5}
        v_lshl_add_u32 v{t+11}, v{t+12}, 5, v{t+11}
        v_add_u32 v{vFH}, s{sT0}, v{t+11}
        v_lshlrev_b32 v{vFT}, 7, v{vFT}
        v_add_u32 v{vFT}, {FLG}, v{vFT}
        v_lshlrev_b32 v{vFH}, 7, v{vFH}
        v_add_u32 v{vFH}, {FLG + 32768}, v{vFH}
        v_lshlrev_b32 v{vFA}, 7, v{vFA}
        v_add_u32 v{vFA}, {FLG + 65536}, v{vFA}
        s_lshr_b32 s{sT0}, s{sW}, 1
        s_and_b32 s{sT1}, s{sW}, 1                ; hw
        s_mul_i32 s{sT2}, s{sT0}, {8*COPY}
        s_add_u32 s{sT2}, s{sT2}, {S}
        v_and_b32 v{t+10}, 7, v{t+5}              ; r
        v_lshrrev_b32 v{t+11}, 3, v{t+5}          ; beta
        v_mul_u32_u24 v{t+12}, {COPY}, v{t+10}
        v_lshl_add_u32 v{t+12}, v{t+11}, 8, v{t+12}
        v_lshl_add_u32 v{t+12}, v{t+2}, 4, v{t+12}
        v_add_u32 v{t+12}, s{sT2}, v{t+12}        ; vbase
        s_lshl_b32 s{sT3}, s{sT1}, 8
        v_subrev_u32 v{vUb}, s{sT3}, v{t+12}
        v_lshlrev_b32 v{t+13}, 5, v{t+10}
        v_lshl_add_u32 v{t+13}, v{t+2}, 4, v{t+13}
        v_add_u32 v{t+13}, {KT}, v{t+13}
        s_cmp_eq_u32 s{sT1}, 1
        s_cselect_b32 s{sT3}, 0, 1                ; hw? 0 : 1
        v_or_b32 v{t+11}, s{sT3}, v{t+11}
        v_cmp_ne_u32 vcc, 0, v{t+11}
        v_cndmask_b32 v{vU0}, v{t+13}, v{vUb}, vcc
        v_sub_u32 v{t+10}, v{t+5}, v{t+2}         ; m - kg
        v_add_u32 v{t+10}, 3, v{t+10}
        v_lshlrev_b32 v{t+10}, 4, v{t+10}
        s_mul_i32 s{sT2}, s{sT0}, {KIMGC}
        s_lshl_b32 s{sT3}, s{sT1}, 8
        s_add_u32 s{sT2}, s{sT2}, s{sT3}
        s_add_u32 s{sT2}, s{sT2}, {KIMG}
        v_add_u32 v{vKr}, s{sT2}, v{t+10}
        s_mul_i32 s{sT2}, s{sT0}, {8*COPY}
        s_lshl_b32 s{sT3}, s{sT1}, 11
        s_add_u32 s{sT2}, s{sT2}, s{sT3}
        s_add_u32 s{sT2}, s{sT2}, {S + 7*COPY}
        v_lshlrev_b32 v{t+10}, 8, v{t+9}
        v_lshl_add_u32 v{t+10}, v{t+5}, 4, v{t+10}
        v_lshl_add_u32 v{t+10}, v{t+8}, 3, v{t+10}
        v_add_u32 v{vDs}, s{sT2}, v{t+10}
        v_lshlrev_b32 v{t+10}, 1, v{t+2}          ; 2*((l>>4)&3)
        v_xor_b32 v{t+10}, v{t+10}, v{t+1}
        v_lshlrev_b32 v{t+11}, 10, v{t}
        v_lshl_add_u32 v{vW2d}, v{t+10}, 4, v{t+11}
        v_lshlrev_b32 v{t+11}, 12, v{t}
        v_lshl_add_u32 v{vAd}, v{t+10}, 4, v{t+11}
        v_lshrrev_b32 v{t+10}, 1, v{t+6}          ; r>>1
        v_lshl_add_u32 v{t+10}, v{t+2}, 1, v{t+10}
        v_and_b32 v{t+10}, 3, v{t+10}             ; x
        v_lshl_add_u32 v{t+11}, v{t+2}, 2, v{t+6} ; 4g+r
        v_lshlrev_b32 v{t+11}, 7, v{t+11}
        v_lshl_add_u32 v{t+11}, v{t+7}, 3, v{t+11}
        s_mul_i32 s{sT2}, s{sW}, 20480
        ''')
        for ct in range(4):
            a(f'''
            v_xor_b32 v{t+12}, {ct}, v{t+10}
            v_lshl_add_u32 v{t+12}, v{t+12}, 5, v{t+11}
            v_add_u32 v{vA2+ct}, s{sT2}, v{t+12}
            ''')
        a(f'''
        v_xor_b32 v{t+12}, s{sW}, v{t+10}
        v_lshl_add_u32 v{t+12}, v{t+12}, 5, v{t+11}
        v_add_u32 v{vAr}, {ATL}, v{t+12}
        s_cmp_eq_u32 s{sW}, 3
        s_cselect_b32 s{sT2}, 0x7ff00000, 0
        v_add_u32 v{vHl}, s{sT2}, v{vUd}
        ''')
    def tphase(self):
        a = self.a; t = vT
        b = 56
        a(f'''
        v_and_b32 v{b}, 15, v{vL}                 ; i
        v_lshrrev_b32 v{b+1}, 4, v{vL}            ; g
        v_lshrrev_b32 v{b+2}, 2, v{b}             ; r
        v_and_b32 v{b+3}, 3, v{vL}                ; c
        v_lshrrev_b32 v{b+4}, 1, v{b+1}
        v_mul_u32_u24 v{b+4}, {KREG}, v{b+4}
        v_and_b32 v{b+5}, 1, v{b+1}
        v_lshl_add_u32 v{b+5}, v{b+5}, 3, v{b+2}
        v_lshl_add_u32 v{b+4}, v{b+5}, 7, v{b+4}
        v_lshl_add_u32 v{b+4}, v{b+3}, 3, v{b+4}
        s_lshl_b32 s{sT0}, s{sW}, 5
        s_add_u32 s{sT0}, s{sT0}, {S}
        v_add_u32 v{b+4}, s{sT0}, v{b+4}
        s_mul_i32 s{sT1}, s{sW}, {KREG}
        s_add_u32 s{sT1}, s{sT1}, {S+4096}
        v_mul_u32_u24 v{b+5}, 144, v{b}
        v_lshl_add_u32 v{b+5}, v{b+1}, 4, v{b+5}
        v_add_u32 v{b+5}, s{sT1}, v{b+5}
        v_lshrrev_b32 v{b+6}, 3, v{vL}
        v_and_b32 v{b+7}, 7, v{vL}
        v_mul_u32_u24 v{b+8}, 144, v{b+6}
        v_lshl_add_u32 v{b+8}, v{b+7}, 4, v{b+8}
        v_add_u32 v{b+8}, s{sT1}, v{b+8}
        v_mul_u32_u24 v{b+9}, {UROW}, v{b+6}
        v_lshl_add_u32 v{b+9}, v{b+7}, 4, v{b+9}
        v_cmp_eq_u32 s[{sM0}:{sM0+1}], 0, v{b+7}
        s_lshl_b32 s{sT0}, s{sCTT}, 6
        s_lshl_b32 s{sT1}, s{sW}, 4
        s_add_u32 s{sT0}, s{sT0}, s{sT1}
        s_mul_i32 s{sT0}, s{sT0}, {UROW}
        s_lshl_b32 s{sT1}, s{sJT}, 7
        s_add_u32 s{sT0}, s{sT0}, s{sT1}
        s_add_u32 s{sT0}, s{sT0}, 128
        ''')
        a.wait_vm('tt')
        a('s_barrier')
        u = 68
        for q in range(2):
            for hh in range(2):
                a.dsop(f'ds_read_b64_tr_b16 v[{u+4*q+2*hh}:{u+4*q+2*hh+1}], v{b+4} offset:{q*36864+hh*512}', 'ttr')
        a.wait_lg('ttr')
        for q in range(2):
            a.dsop(f'ds_write_b128 v{b+5}, v[{u+4*q}:{u+4*q+3}] offset:{64*q}', 'tw')
        a.wait_lg('tw')
        w = 76
        for hf in range(2):
            a.dsop(f'ds_read_b128 v[{w+4*hf}:{w+4*hf+3}], v{b+8} offset:{8*144*hf}', f'tb{hf}')
        a.wait_vm('tp')
        for hf in range(2):
            a.wait_lg(f'tb{hf}')
            d = w + 4*hf; o = 84 + 4*hf
            a(f's_add_u32 s{sT1}, s{sT0}, {UT0 + hf*8*UROW}')
            a.vmop(f'buffer_store_dwordx4 v[{d}:{d+3}], v{b+9}, s[{sWS}:{sWS+3}], s{sT1} offen sc1', 'ts')
            a(f'v_mov_b32_dpp v92, v{d+3} row_shr:1 row_mask:0xf bank_mask:0xf')
            a(f'v_cndmask_b32 v92, v92, v{54+hf}, s[{sM0}:{sM0+1}]')
            a(f'v_alignbit_b32 v{o}, v{d}, v92, 16')
            for k in range(1, 4): a(f'v_alignbit_b32 v{o+k}, v{d+k}, v{d+k-1}, 16')
            a(f's_add_u32 s{sT1}, s{sT0}, {UT1 + hf*8*UROW}')
            a.vmop(f'buffer_store_dwordx4 v[{o}:{o+3}], v{b+9}, s[{sWS}:{sWS+3}], s{sT1} offen sc1', 'ts')
        l = self.lab('TZ')
        a(f's_cmp_lg_u32 s{sJT}, 0\ns_cbranch_scc1 {l}')
        a(f's_mov_b64 exec, s[{sM0}:{sM0+1}]')
        for k in range(4): a(f'v_mov_b32 v{96+k}, 0')
        for ver in (UT0, UT1):
            for hf in range(2):
                a(f's_add_u32 s{sT1}, s{sT0}, {ver + hf*8*UROW - 16}')
                a(f'buffer_store_dwordx4 v[96:99], v{b+9}, s[{sWS}:{sWS+3}], s{sT1} offen sc1')
        a('s_mov_b64 exec, -1')
        a.label(l)
        a('s_barrier')
    def kgen(self):
        a = self.a
        kw = 54
        a(f'''
        s_mul_i32 s{sT0}, s{sW}, {KREG}
        s_add_u32 s{sT0}, s{sT0}, {S}
        v_lshl_add_u32 v{kw}, v{vL}, 2, s{sT0}
        s_mov_b32 s{sK}, 0x3fb8aa3b        ; log2(e)
        s_mov_b32 s{sK+1}, 0x32a57060
        s_mov_b32 s{sK+2}, 0x3e22f983      ; 1/(2pi)
        s_mov_b32 s{sK+3}, 0x3f317218      ; ln2
        ''')
        a.wait_vm('kp')
        for i in range(8): a(f'v_lshlrev_b32 v{46+i}, 16, v{46+i}')
        a(f'v_mov_b32 v{vDsk}, v53')
        a(f'''
        v_mul_f32 v56, s{sK}, v52
        v_fma_f32 v57, v52, s{sK}, -v56
        v_fma_f32 v57, v52, s{sK+1}, v57
        v_exp_f32 v56, v56
        v_mul_f32 v57, s{sK+3}, v57
        v_fma_f32 v56, v56, v57, v56
        v_cvt_pk_bf16_f32 v56, v56, v56
        v_lshlrev_b32 v56, 16, v56          ; dt
        v_mul_f32 v46, v56, v46             ; s_re
        v_mul_f32 v47, v56, v47             ; s_im
        v_mul_f32 v48, v56, v48
        v_mul_f32 v49, v56, v49
        v_mul_f32 v46, s{sK}, v46           ; e1
        v_mul_f32 v47, s{sK+2}, v47         ; th1
        ''')
        def cmul(d, x, y):
            a(f'v_pk_mul_f32 v[{d}:{d+1}], v[{x}:{x+1}], v[{y}:{y+1}] op_sel:[0,0] op_sel_hi:[0,1]')
            a(f'v_pk_fma_f32 v[{d}:{d+1}], v[{x}:{x+1}], v[{y}:{y+1}], v[{d}:{d+1}] op_sel:[1,1,0] op_sel_hi:[1,0,1] neg_lo:[1,0,0]')
        def cmul2(d1, x1, y1, d2, x2, y2):
            a(f'v_pk_mul_f32 v[{d1}:{d1+1}], v[{x1}:{x1+1}], v[{y1}:{y1+1}] op_sel:[0,0] op_sel_hi:[0,1]')
            a(f'v_pk_mul_f32 v[{d2}:{d2+1}], v[{x2}:{x2+1}], v[{y2}:{y2+1}] op_sel:[0,0] op_sel_hi:[0,1]')
            a(f'v_pk_fma_f32 v[{d1}:{d1+1}], v[{x1}:{x1+1}], v[{y1}:{y1+1}], v[{d1}:{d1+1}] op_sel:[1,1,0] op_sel_hi:[1,0,1] neg_lo:[1,0,0]')
            a(f'v_pk_fma_f32 v[{d2}:{d2+1}], v[{x2}:{x2+1}], v[{y2}:{y2+1}], v[{d2}:{d2+1}] op_sel:[1,1,0] op_sel_hi:[1,0,1] neg_lo:[1,0,0]')
        W = 58
        cmul(W, 50, 48)
        zs = [(60, 1.0), (62, 8.0), (64, 128.0)]
        tmp = 100
        for k, (z, sc) in enumerate(zs):
            e, th = tmp + 4*k, tmp + 4*k + 1
            if sc == 1.0:
                a(f'v_mov_b32 v{e}, v46\nv_fract_f32 v{th}, v47')
            else:
                c = '0x41000000' if sc == 8.0 else '0x43000000'
                a(f'v_mul_f32 v{e}, {c}, v46\nv_mul_f32 v{th}, {c}, v47\nv_fract_f32 v{th}, v{th}')
        for k in range(3): a(f'v_exp_f32 v{tmp+4*k}, v{tmp+4*k}')
        for k in range(3): a(f'v_cos_f32 v{tmp+4*k+2}, v{tmp+4*k+1}')
        for k in range(3): a(f'v_sin_f32 v{tmp+4*k+3}, v{tmp+4*k+1}')
        for k, (z, sc) in enumerate(zs):
            a(f'v_mul_f32 v{z}, v{tmp+4*k}, v{tmp+4*k+2}\nv_mul_f32 v{z+1}, v{tmp+4*k}, v{tmp+4*k+3}')
        self.kt = 0
        def emit(v, z, conj):
            r = 112 + (self.kt % 4); self.kt += 1
            a(f'v_cvt_pk_bf16_f32 v{r}, v{z}, {"-" if conj else ""}v{z+1}')
            a.dsop(f'ds_write_b32 v{kw}, v{r} offset:{v*288}', 'kv')
        Z1, Z8, Z128 = 60, 62, 64
        P = {1: 60, 2: 66, 3: 68, 4: 70, 5: 72, 6: 74, 7: 76}
        Q = {1: 62, 2: 78, 3: 80, 4: 82}
        a('v_mov_b32 v116, 0x3f80')
        a.dsop(f'ds_write_b32 v{kw}, v116 offset:{48*288}', 'kv')
        emit(0, W, True); emit(49, Z8, False)
        cmul2(P[2], Z1, Z1, Q[2], Z8, Z8)
        WQ = {0: W, 1: 84}
        cmul2(P[3], P[2], Z1, P[4], P[2], P[2])
        cmul2(Q[3], Q[2], Z8, Q[4], Q[2], Q[2])
        emit(50, Q[2], False)
        cmul2(P[5], P[4], Z1, P[6], P[4], P[2])
        emit(51, Q[3], False); emit(52, Q[4], False)
        cmul2(P[7], P[4], P[3], WQ[1], W, Z128)
        ring = {1: Q[1], 2: Q[2], 3: Q[3], 4: Q[4]}
        cols = []
        for j in range(5, 16):
            cols.append(j)
        R0, R1 = 86, 88
        rows_todo = []
        for e in range(8): rows_todo.append((e, 0, e))
        for e in range(8): rows_todo.append((8+e, 1, e))
        for e in range(4): rows_todo.append((16+e, 2, 2*e))
        for e in range(4): rows_todo.append((20+e, 3, 2*e))
        for h in range(4):
            for e in range(2): rows_todo.append((24+2*h+e, 4+h, 4*e))
        for h in range(8): rows_todo.append((32+h, 8+h, 0))
        rows_todo.append((40, 16, 0))
        wq = lambda h: W if h == 0 else (84 if h == 1 else 90 + 2*(h % 3))
        have = 1
        colq = list(cols)
        def colreg(j): return ring[j] if j in ring else None
        def next_col():
            if not colq: return None
            j = colq.pop(0)
            d = 118 + 2*((j-5) % 5)
            src = ring[j-4]
            ring[j] = d
            return (j, d, src, Q[4])
        pending = [r for r in rows_todo if r[0] != 0]
        while pending or colq:
            jobs = []
            if pending:
                v, h, e = pending[0]
                while have < h:
                    c = next_col()
                    if c:
                        cmul2(wq(have+1), wq(have), Z128, c[1], c[2], c[3]); have += 1
                        emit(48 + c[0], c[1], False)
                    else:
                        cmul(wq(have+1), wq(have), Z128); have += 1
                if e == 0:
                    pending.pop(0); emit(v, wq(h), True); continue
                if len(pending) > 1 and pending[1][1] == h and pending[1][2] != 0:
                    v2, h2, e2 = pending[1]
                    cmul2(R0, wq(h), P[e], R1, wq(h), P[e2]); pending = pending[2:]
                    emit(v, R0, True); emit(v2, R1, True)
                else:
                    c = next_col()
                    if c:
                        cmul2(R0, wq(h), P[e], c[1], c[2], c[3]); emit(48 + c[0], c[1], False)
                    else: cmul(R0, wq(h), P[e])
                    pending.pop(0); emit(v, R0, True)
            else:
                c = next_col(); cmul(c[1], c[2], c[3]); emit(48 + c[0], c[1], False)
        t = 100
        a(f'''
        v_and_b32 v{t}, 15, v{vL}
        v_lshrrev_b32 v{t+1}, 4, v{vL}
        s_lshr_b32 s{sT0}, s{sW}, 1
        s_and_b32 s{sT1}, s{sW}, 1
        s_mul_i32 s{sT2}, s{sT0}, {2*KREG}
        s_add_u32 s{sT2}, s{sT2}, {S}
        v_mul_u32_u24 v{t+2}, 288, v{t}
        v_lshl_add_u32 v{t+2}, v{t+1}, 4, v{t+2}
        v_add_u32 v{t+2}, s{sT2}, v{t+2}
        v_add_u32 v{t+3}, {48*288}, v{t+2}        ; B address
        s_mul_i32 s{sT3}, s{sT1}, {16*288}
        v_add_u32 v{t+2}, s{sT3}, v{t+2}          ; A address
        s_mul_i32 s{sT2}, s{sT0}, 1536
        s_lshl_b32 s{sT3}, s{sT1}, 5
        s_add_u32 s{sT2}, s{sT2}, s{sT3}
        s_add_u32 s{sT2}, s{sT2}, {KT}
        v_mul_u32_u24 v{t+4}, 96, v{t}
        v_lshl_add_u32 v{t+4}, v{t+1}, 3, v{t+4}
        v_add_u32 v{t+4}, s{sT2}, v{t+4}
        ''')
        a.wait_lg_all(); a.wait_vm_all()
        self.nonce_get()
        a('s_barrier')
        self.publish(0, 26)
        f = 128
        for ks8 in range(8):
            mh, ks = ks8 // 4, ks8 % 4
            off = mh*KREG + 64*ks
            a.dsop(f'ds_read_b128 v[{f+12*ks8}:{f+12*ks8+3}], v{t+3} offset:{off}', f'kf{ks8}')
            for tt in range(2):
                a.dsop(f'ds_read_b128 v[{f+12*ks8+4+4*tt}:{f+12*ks8+7+4*tt}], v{t+2} offset:{off+tt*16*288}', f'kf{ks8}')
        D = 112
        for ks8 in range(8):
            a.wait_lg(f'kf{ks8}')
            for tt in range(2):
                c = '0' if ks8 == 0 else f'v[{D+4*tt}:{D+4*tt+3}]'
                a(f'v_mfma_f32_16x16x32_bf16 v[{D+4*tt}:{D+4*tt+3}], v[{f+12*ks8+4+4*tt}:{f+12*ks8+7+4*tt}], v[{f+12*ks8}:{f+12*ks8+3}], {c}')
        for tt in range(2):
            a(f'v_cvt_pk_bf16_f32 v{120+2*tt}, v{D+4*tt}, v{D+4*tt+1}')
            a(f'v_cvt_pk_bf16_f32 v{121+2*tt}, v{D+4*tt+2}, v{D+4*tt+3}')
            a.dsop(f'ds_write_b64 v{t+4}, v[{120+2*tt}:{121+2*tt}] offset:{32*tt}', 'kt')
        e = 104
        a(f'''
        v_and_b32 v{e}, 15, v0
        v_mul_u32_u24 v{e}, 96, v{e}             ; j*96
        v_lshrrev_b32 v{e+1}, 4, v0              ; c>>4
        v_add_u32 v{e+2}, 1, v0
        v_and_b32 v{e+3}, 15, v{e+2}
        v_mul_u32_u24 v{e+3}, 96, v{e+3}         ; j'*96
        v_lshrrev_b32 v{e+2}, 4, v{e+2}          ; (c+1)>>4
        v_lshlrev_b32 v{e+4}, 4, v0
        v_add_u32 v{e+4}, {KIMG + 240}, v{e+4}
        v_add_u32 v{e}, {KT}, v{e}
        v_add_u32 v{e+3}, {KT}, v{e+3}
        ''')
        a.wait_lg_all()
        a('s_barrier')
        l1, l2, l3 = self.lab('EX1'), self.lab('EX2'), self.lab('EXD')
        a(f's_cmp_eq_u32 s{sW}, 1\ns_cbranch_scc1 {l1}\ns_cmp_ge_u32 s{sW}, 2\ns_cbranch_scc1 {l2}')
        snap = a.snapshot()
        x = 128
        a(f'''
        v_lshl_add_u32 v{e+5}, v{e+1}, 4, v{e}            ; P0: j*96 + 16h
        v_lshl_add_u32 v{e+6}, v{e+1}, 3, v{e}            ; P1: j*96 + 32 + 8(h-2) = j*96 + 16 + 8*(c>>4)
        v_lshl_add_u32 v{e+7}, v{e+2}, 3, v{e+3}          ; next: j'*96 + 2*(16+4*(h'-2)) = j'*96 + 16 + 8*((c+1)>>4)
        s_mov_b32 s{sK}, 0x07060100
        ''')
        for ch in range(2):
            o = x + 16*ch
            a.dsop(f'ds_read_b128 v[{o}:{o+3}], v{e+5} offset:{1536*ch}', 'e')
            a.dsop(f'ds_read_b64 v[{o+4}:{o+5}], v{e+6} offset:{1536*ch+16}', 'e')
            a.dsop(f'ds_read_u16 v{o+6}, v{e+7} offset:{1536*ch+16}', 'e')
        a.wait_lg_all()
        for ch in range(2):
            o = x + 16*ch; d = o + 8
            a('s_mov_b32 exec_lo, -1\ns_mov_b32 exec_hi, 0')
            for k in range(4): a(f'v_alignbit_b32 v{d+k}, v{o+3-k}, v{o+3-k}, 16')
            a('s_mov_b32 exec_lo, 0\ns_mov_b32 exec_hi, -1')
            a(f'v_perm_b32 v{d}, v{o+5}, v{o+6}, s{sK}')
            a(f's_mov_b32 s{sK+1}, 0x05040504\nv_perm_b32 v{d+1}, v{o+5}, v{o+5}, s{sK+1}')
            a(f's_mov_b32 s{sK+2}, 0x07060100\nv_perm_b32 v{d+2}, v{o+4}, v{o+5}, s{sK+2}')
            a(f'v_perm_b32 v{d+3}, v{o+4}, v{o+4}, s{sK+1}')
            a('s_mov_b64 exec, -1')
            a.dsop(f'ds_write_b128 v{e+4}, v[{d}:{d+3}] offset:{KIMGC*ch}', 'e')
        a.wait_lg_all()
        a(f's_branch {l3}')
        a.restore(snap); a.label(l1)
        a(f'''
        v_lshl_add_u32 v{e+5}, v{e+1}, 2, v{e}
        v_lshl_add_u32 v{e+7}, v{e+2}, 2, v{e+3}
        s_mov_b32 s{sK}, 0x01000100
        s_mov_b32 s{sK+1}, 0x03020302
        s_mov_b32 s{sK+2}, 0x01000302
        ''')
        for ch in range(2):
            o = x + 16*ch
            a.dsop(f'ds_read_b32 v{o}, v{e+5} offset:{1536*ch+32}', 'e')
            a.dsop(f'ds_read_u16 v{o+1}, v{e+7} offset:{1536*ch+32}', 'e')
        a.wait_lg_all()
        for ch in range(2):
            o = x + 16*ch; d = o + 8
            a(f'v_perm_b32 v{d}, v{o+1}, v{o+1}, s{sK}')
            a(f'v_perm_b32 v{d+1}, v{o}, v{o}, s{sK+1}')
            a(f'v_perm_b32 v{d+2}, v{o}, v{o}, s{sK+2}')
            a(f'v_perm_b32 v{d+3}, v{o}, v{o}, s{sK}')
            a.dsop(f'ds_write_b128 v{e+4}, v[{d}:{d+3}] offset:{KIMGC*ch}', 'e')
        a.wait_lg_all()
        a(f's_branch {l3}')
        a.restore(snap); a.label(l2)
        a(f'''
        v_lshl_add_u32 v{e+5}, v{e+1}, 1, v{e}
        v_lshl_add_u32 v{e+7}, v{e+2}, 1, v{e+3}
        s_mov_b32 s{sK}, 0x01000100
        s_mov_b32 s{sK+1}, 0x05040100
        v_and_b32 v{e+6}, 1, v0
        v_cmp_eq_u32 vcc, 0, v{e+6}
        ''')
        for ch in range(2):
            o = x + 16*ch
            a.dsop(f'ds_read_u16 v{o}, v{e+5} offset:{1536*ch+48}', 'e')
            a.dsop(f'ds_read_u16 v{o+1}, v{e+7} offset:{1536*ch+48}', 'e')
        a.wait_lg_all()
        for ch in range(2):
            o = x + 16*ch; d = o + 8
            a(f'v_cndmask_b32 v{o+2}, v{o+1}, v{o}, vcc')
            a(f'v_perm_b32 v{d}, v{o+1}, v{o+1}, s{sK}')
            a(f'v_perm_b32 v{d+1}, v{o+2}, v{o+1}, s{sK+1}')
            a(f'v_perm_b32 v{d+2}, v{o}, v{o}, s{sK}')
            a(f'v_mov_b32 v{d+3}, v{d+2}')
            a.dsop(f'ds_write_b128 v{e+4}, v[{d}:{d+3}] offset:{KIMGC*ch}', 'e')
        a(f'''
        v_lshlrev_b32 v{e+6}, 4, v{vL}
        v_add_u32 v{e+6}, {KIMG}, v{e+6}
        v_mov_b32 v{x}, 0
        v_mov_b32 v{x+1}, 0
        v_mov_b32 v{x+2}, 0
        v_mov_b32 v{x+3}, 0
        s_mov_b64 exec, 0x7fff
        ''')
        for ch in range(2):
            a.dsop(f'ds_write_b128 v{e+6}, v[{x}:{x+3}] offset:{KIMGC*ch}', 'e')
        a('s_mov_b64 exec, -1')
        a.wait_lg_all()
        a.label(l3)
        a.hist = []
    def ucopy_dma(self):
        a = self.a
        a(f'''
        s_lshr_b32 s{sT0}, s{sW}, 1
        s_and_b32 s{sT1}, s{sW}, 1
        s_add_u32 s{sT2}, s{sT0}, s{sCH}
        s_mul_i32 s{sT2}, s{sT2}, {UROW}
        s_add_u32 s{sT2}, s{sT2}, 128
        s_mul_i32 s{sT3}, s{sT0}, {8*COPY}
        s_mul_i32 s{sT1}, s{sT1}, {4*COPY}
        s_add_u32 s{sT3}, s{sT3}, s{sT1}
        s_add_u32 s{sT3}, s{sT3}, {S}
        s_and_b32 s{sT1}, s{sW}, 1
        s_lshl_b32 s{sT1}, s{sT1}, 3
        s_add_u32 s{sT2}, s{sT2}, s{sT1}
        ''')
        for rr in range(4):
            base = (UT0 + 2*(rr-7)) if rr & 1 else (UT1 + 2*(rr-6))
            for i in range(4):
                a(f's_add_u32 m0, s{sT3}, {rr*COPY + 1024*i}')
                off = base + 1024*i
                if off >= 0: a(f's_add_u32 s{sT1}, s{sT2}, {off}')
                else: a(f's_sub_u32 s{sT1}, s{sT2}, {-off}')
                a.vmop(f'buffer_load_dwordx4 v{vUd}, s[{sWS}:{sWS+3}], s{sT1} offen sc1 lds', 'uc')
    def gemm1(self, gate):
        a = self.a
        ACC = 32
        F = [80, 112]
        GW = 144
        nt = 1 if gate else 6
        acc = lambda t, rs: ACC + 8*t + 4*rs
        if gate:
            a(f'v_lshrrev_b32 v208, 4, v{vL}\nv_lshlrev_b32 v208, 4, v208')
            for ks in range(16):
                a.vmop(f'global_load_dwordx4 v[{GW+4*ks}:{GW+4*ks+3}], v208, s[28:29] offset:{64*ks}', 'gw')
        def reads(st, ks, fs):
            slot = st % 3; f = F[fs]; L = []
            vx = vXr0 + ks
            for rs in range(2):
                L.append((f'ds_read_b128 v[{f+4*rs}:{f+4*rs+3}], v{vx} offset:{XS+slot*16384+rs*2048}', f'x{fs}_{rs}'))
            if not gate:
                for t in range(6):
                    va = vWe if t % 2 == 0 else vWo
                    for hh in range(2):
                        off = slot*12288 + (32*ks + 4*hh)*192 + 32*t
                        L.append((f'ds_read_b64_tr_b16 v[{f+8+4*t+2*hh}:{f+8+4*t+2*hh+1}], v{va} offset:{off}', f'w{fs}_{t}'))
            return L
        def mfmas(st, ks, fs, side, first):
            f = F[fs]; side = list(side); n = 0
            for t in range(nt):
                for rs in range(2):
                    a.wait_lg([f'x{fs}_{rs}', f'w{fs}_{t}'])
                    c = '0' if first else f'v[{acc(t,rs)}:{acc(t,rs)+3}]'
                    A_ = f'v[{GW+4*(2*st+ks)}:{GW+4*(2*st+ks)+3}]' if gate else f'v[{f+8+4*t}:{f+11+4*t}]'
                    a(f'v_mfma_f32_16x16x32_bf16 v[{acc(t,rs)}:{acc(t,rs)+3}], {A_}, v[{f+4*rs}:{f+4*rs+3}], {c}')
                    k = 2 if n < 4 else 1
                    for _ in range(k):
                        if side: side.pop(0)()
                    n += 1
            while side: side.pop(0)()
        dsf = lambda x: (lambda: a.dsop(x[0], x[1]))
        for x in reads(0, 0, 0): a.dsop(*x)
        if gate: a.wait_vm('gw')
        for st in range(8):
            mfmas(st, 0, 0, [dsf(x) for x in reads(st, 1, 1)], st == 0)
            if st < 7:
                a.wait_lg_all()
                a.wait_vm(f'g1_{st+1}')
                if st == 6: self.tcheck = True
                a('s_barrier')
                if st == 0:
                    l = self.lab('ZA')
                    a(f's_cmp_lg_u32 s{sW}, 0\ns_cbranch_scc1 {l}')
                    a(f'v_lshlrev_b32 v209, 3, v{vL}\nv_add_u32 v209, {KT}, v209\nv_mov_b32 v210, 0\nv_mov_b32 v211, 0')
                    a(f'ds_write_b64 v209, v[210:211]\ns_waitcnt lgkmcnt(0)')
                    a.label(l)
                if st + 3 <= 7: self.g1_dma(st+3, not gate)
                if st == 2: self.poll_issue(vFT, 'pT', 212)
                if st == 4:
                    self.poll_check(vFT, 'pT', 212)
                    self.ucopy_dma()
                mfmas(st, 1, 1, [dsf(x) for x in reads(st+1, 0, 0)], False)
            else:
                mfmas(st, 1, 1, [], False)
        a.wait_vm('uc')
        if not gate:
            a(f'''
            s_lshl_b32 s{sT0}, s{sR}, 3
            s_lshl_b32 s{sT1}, s{sW}, 1
            s_add_u32 s{sT0}, s{sT0}, s{sT1}
            s_mul_i32 s{sT0}, s{sT0}, 43
            s_mul_i32 s{sT1}, s{sC}, 3
            s_add_u32 s{sT0}, s{sT0}, s{sT1}
            s_lshl_b32 s{sT0}, s{sT0}, 10
            ''')
            l = self.lab('HS')
            for Gp in range(3):
                if Gp == 1: a(f's_cmp_eq_u32 s{sC}, 14\ns_cbranch_scc1 {l}')
                for rs in range(2):
                    o = 144 + 4*((Gp*2+rs) % 4)
                    for tt in range(2):
                        b = acc(2*Gp+tt, rs)
                        a(f'v_cvt_pk_bf16_f32 v{o+2*tt}, v{b}, v{b+1}')
                        a(f'v_cvt_pk_bf16_f32 v{o+2*tt+1}, v{b+2}, v{b+3}')
                    for k in range(4): a(f'v_pk_max_i16 v{o+k}, v{o+k}, 0')
                    a(f's_add_u32 s{sT1}, s{sT0}, {(rs*43+Gp)*1024}')
                    a(f'buffer_store_dwordx4 v[{o}:{o+3}], v{vUd}, s[{sH}:{sH+3}], s{sT1} offen sc1')
            a.label(l)
        else:
            a(f'''
            s_mov_b32 s{sK}, 0xbfb8aa3b
            s_lshl_b32 s{sT0}, s{sR}, 7
            s_lshl_b32 s{sT1}, s{sW}, 5
            s_add_u32 s{sT0}, s{sT0}, s{sT1}
            s_lshl_b32 s{sT0}, s{sT0}, 2
            s_add_u32 s{sT0}, s{sT0}, {GG}
            v_lshlrev_b32 v212, 2, v{vL}
            ''')
            for rs in range(2):
                b = acc(0, rs); o = 214 + rs
                a(f'''
                v_cvt_pk_bf16_f32 v{o}, v{b}, v{b}
                v_lshlrev_b32 v{o}, 16, v{o}
                v_mul_f32 v{o}, s{sK}, v{o}
                v_exp_f32 v{o}, v{o}
                v_add_f32 v{o}, 1.0, v{o}
                v_rcp_f32 v{o}, v{o}
                v_cvt_pk_bf16_f32 v{o}, v{o}, v{o}
                v_lshlrev_b32 v{o}, 16, v{o}
                ''')
            a('s_mov_b64 exec, 0xffff')
            for rs in range(2):
                a(f's_add_u32 s{sT1}, s{sT0}, {64*rs}')
                a(f'buffer_store_dword v{214+rs}, v212, s[{sWS}:{sWS+3}], s{sT1} offen sc1')
            a('s_mov_b64 exec, -1')
    def gemm1_phase(self):
        a = self.a
        lg, le = self.lab('GATE'), self.lab('G1E')
        a(f's_cmp_eq_u32 s{sC}, 15\ns_cbranch_scc1 {lg}')
        snap = a.snapshot()
        self.gemm1(False)
        a(f's_branch {le}')
        a.restore(snap); a.label(lg)
        self.gemm1(True)
        a.label(le)
        a.merge('pre')
    def w2_dma(self, gl):
        a = self.a; slot = gl % 5
        a(f's_add_u32 s{sT0}, s{sT5}, {gl}\ns_min_u32 s{sT0}, s{sT0}, 42\ns_lshl_b32 s{sT0}, s{sT0}, 15\ns_add_u32 s{sT0}, s{sT0}, s{sT3}')
        for i in range(4):
            a(f's_add_u32 m0, s{sT4}, {slot*4096 + 1024*i}')
            a(f's_add_u32 s{sT1}, s{sT0}, {8192*i}')
            a.vmop(f'buffer_load_dwordx4 v{vW2d}, s[{sW2}:{sW2+3}], s{sT1} offen lds', f'w2_{gl}')
    def w2_reads(self, gl):
        slot = gl % 5; L = []
        for ct in range(4):
            for hh in range(2):
                r = 16*gl + 4*ct + 2*hh
                L.append((f'ds_read_b64_tr_b16 a[{r}:{r+1}], v{vA2+ct} offset:{slot*4096+2048*hh}', f'w2r_{gl}'))
        return L
    def h_load(self, rr, gl, dst):
        a = self.a
        vo = vHl if gl == 10 else vUd
        a(f's_add_u32 s{sT0}, s{sHo+rr}, {gl*1024}')
        a.vmop(f'buffer_load_dwordx4 v[{dst}:{dst+3}], v{vo}, s[{sH}:{sH+3}], s{sT0} offen sc1', f'h_{rr}_{gl}')
    def conv(self):
        a = self.a
        ACC = 40
        FS = [72, 136]
        self.hreg = lambda rr, gl: 72 + 4*(11*rr + gl)
        a(f'''
        s_mul_i32 s{sT4}, s{sW}, 20480
        s_mul_i32 s{sT5}, s{sW}, 11
        s_lshl_b32 s{sT3}, s{sCT}, 7
        ''')
        for rr in range(4):
            a(f'''
            s_add_u32 s{sT0}, s{sW}, {1+rr}
            s_and_b32 s{sT0}, s{sT0}, 3
            s_lshl_b32 s{sT1}, s{sRT}, 2
            s_add_u32 s{sT0}, s{sT0}, s{sT1}
            s_mul_i32 s{sT0}, s{sT0}, 43
            s_add_u32 s{sT0}, s{sT0}, s{sT5}
            s_lshl_b32 s{sHo+rr}, s{sT0}, 10
            ''')
        a('s_barrier')
        for gl in range(5): self.w2_dma(gl)
        def loads(c):
            fs = FS[c & 1]; L = []
            for k in range(8):
                L.append((f'ds_read_b128 v[{fs+4*k}:{fs+4*k+3}], v{vKr} offset:{64*(8*k+c)}', f'K{c}_{k}'))
                vu = vU0 if k == 0 else vUb
                L.append((f'ds_read_b128 v[{fs+32+4*k}:{fs+35+4*k}], v{vu} offset:{64*(8*k+3-c)}', f'U{c}_{k}'))
            return L
        dsf = lambda x: (lambda: a.dsop(x[0], x[1]))
        for x in loads(0): a.dsop(*x)
        first = set()
        for c in range(4):
            fs = FS[c & 1]
            side = []
            if c < 3: side += [dsf(x) for x in loads(c+1)]
            extra = []
            def w2stage(gls, nxt):
                L = [lambda: a.wait_vm([f'w2_{g}' for g in gls])]
                for g in gls: L += [dsf(x) for x in self.w2_reads(g)]
                L.append(lambda: a.wait_lg([f'w2r_{g}' for g in gls]))
                for g in nxt: L.append(lambda g=g: self.w2_dma(g))
                return L
            def pubH():
                a.wait_vm('pre'); a('s_barrier'); self.publish(1, 26)
            if c == 1: extra = [pubH] + w2stage([0, 1], [5, 6])
            if c == 2: extra = w2stage([2, 3, 4], [7, 8, 9]) + [lambda: self.poll_issue(vFH, 'pH', 26)]
            if c == 3:
                extra = w2stage([5], [10]) + w2stage([6], [])
                extra += [lambda: self.poll_check(vFH, 'pH', 26)]
                extra += [(lambda gl=gl: self.h_load(0, gl, self.hreg(0, gl))) for gl in range(11)]
            side = side + extra
            pairs = []
            for s in range(8):
                for o in range(s+1):
                    for (ka, ub) in ({(s, o), (o, s)}):
                        if ka + ub <= 7: pairs.append((ka, ub))
            assert len(pairs) == 36
            per = -(-len(side) // 34)
            for n, (ka, ub) in enumerate(pairs):
                tau = ka + ub
                a.wait_lg([f'K{c}_{ka}', f'U{c}_{ub}'])
                cc = f'v[{ACC+4*tau}:{ACC+4*tau+3}]' if tau in first else '0'
                first.add(tau)
                a(f'v_mfma_f32_16x16x32_bf16 v[{ACC+4*tau}:{ACC+4*tau+3}], v[{fs+32+4*ub}:{fs+35+4*ub}], v[{fs+4*ka}:{fs+4*ka+3}], {cc}')
                for _ in range(per):
                    if side: side.pop(0)()
            while side: side.pop(0)()
            self.stamp(f'class{c}')
        for k in range(4):
            a.dsop(f'ds_read_b64 v[{248+2*k}:{249+2*k}], v{vDs} offset:{512*k}', 'us')
        a.wait_lg_all()
        a('s_barrier')
        a(f'''
        s_and_b32 s{sT1}, s{sW}, 1
        s_lshl_b32 s{sT0}, s{sW}, 12
        s_add_u32 s{sT0}, s{sT0}, {XCH}
        v_add_u32 v2, s{sT0}, v{vUd}
        s_xor_b32 s{sT0}, s{sW}, 1
        s_lshl_b32 s{sT0}, s{sT0}, 12
        s_add_u32 s{sT0}, s{sT0}, {XCH}
        v_add_u32 v3, s{sT0}, v{vUd}
        s_cmp_eq_u32 s{sT1}, 0
        ''')
        l1, l2 = self.lab('XA'), self.lab('XB')
        a(f's_cbranch_scc0 {l1}')
        for k in range(4): a(f'ds_write_b128 v2, v[{ACC+16+4*k}:{ACC+19+4*k}] offset:{1024*k}')
        a(f's_branch {l2}')
        a.label(l1)
        for k in range(4): a(f'ds_write_b128 v2, v[{ACC+4*k}:{ACC+3+4*k}] offset:{1024*k}')
        for k in range(16): a(f'v_mov_b32 v{ACC+k}, v{ACC+16+k}')
        a.label(l2); a.hist = []
        a('s_waitcnt lgkmcnt(0)\ns_barrier')
        X = ACC + 16
        for k in range(4): a.dsop(f'ds_read_b128 v[{X+4*k}:{X+4*k+3}], v3 offset:{1024*k}', f'xr{k}')
        a(f'''
        s_lshr_b32 s{sT0}, s{sW}, 1
        s_add_u32 s{sT0}, s{sT0}, s{sCH}
        s_lshl_b32 s{sT0}, s{sT0}, 12
        s_lshl_b32 s{sT1}, s{sT1}, 11
        s_add_u32 s{sT0}, s{sT0}, s{sT1}
        s_add_u32 s{sT0}, s{sT0}, {AT}
        v_lshrrev_b32 v4, 4, v{vL}
        v_and_b32 v5, 1, v4
        v_lshrrev_b32 v4, 1, v4
        v_lshlrev_b32 v4, 8, v4
        v_lshl_add_u32 v4, v5, 9, v4
        v_and_b32 v5, 15, v{vL}
        v_lshl_add_u32 v4, v5, 4, v4
        s_mov_b32 s{sK}, 0xffff0000
        ''')
        P = [6, 8]
        res = {}
        for k in range(4):
            a.wait_lg(f'xr{k}')
            y = ACC + 4*k; x = X + 4*k; u = 248 + 2*k
            a(f'v_pk_add_f32 v[{y}:{y+1}], v[{y}:{y+1}], v[{x}:{x+1}]')
            a(f'v_pk_add_f32 v[{y+2}:{y+3}], v[{y+2}:{y+3}], v[{x+2}:{x+3}]')
            a(f'v_cvt_pk_bf16_f32 v{y}, v{y}, v{y+1}\nv_cvt_pk_bf16_f32 v{y+2}, v{y+2}, v{y+3}')
            a(f'v_and_b32 v{y+1}, s{sK}, v{y}\nv_and_b32 v{y+3}, s{sK}, v{y+2}')
            a(f'v_lshlrev_b32 v{y}, 16, v{y}\nv_lshlrev_b32 v{y+2}, 16, v{y+2}')
            a(f'v_lshlrev_b32 v{x}, 16, v{u}\nv_and_b32 v{x+1}, s{sK}, v{u}')
            a(f'v_lshlrev_b32 v{x+2}, 16, v{u+1}\nv_and_b32 v{x+3}, s{sK}, v{u+1}')
            for i in range(4): a(f'v_mul_f32 v{x+i}, v{vDsk}, v{x+i}')
            a(f'v_cvt_pk_bf16_f32 v{x}, v{x}, v{x+1}\nv_cvt_pk_bf16_f32 v{x+2}, v{x+2}, v{x+3}')
            a(f'v_and_b32 v{x+1}, s{sK}, v{x}\nv_and_b32 v{x+3}, s{sK}, v{x+2}')
            a(f'v_lshlrev_b32 v{x}, 16, v{x}\nv_lshlrev_b32 v{x+2}, 16, v{x+2}')
            a(f'v_pk_add_f32 v[{y}:{y+1}], v[{y}:{y+1}], v[{x}:{x+1}]')
            a(f'v_pk_add_f32 v[{y+2}:{y+3}], v[{y+2}:{y+3}], v[{x+2}:{x+3}]')
        for p in range(2):
            k = 2*p; o = X + 4*p
            ya, yb = ACC + 4*k, ACC + 4*(k+1)
            a(f'v_cvt_pk_bf16_f32 v{o}, v{ya}, v{ya+1}\nv_cvt_pk_bf16_f32 v{o+1}, v{ya+2}, v{ya+3}')
            a(f'v_cvt_pk_bf16_f32 v{o+2}, v{yb}, v{yb+1}\nv_cvt_pk_bf16_f32 v{o+3}, v{yb+2}, v{yb+3}')
            a(f'v_permlane16_swap_b32 v{o}, v{o+2}')
            a(f'v_permlane16_swap_b32 v{o+1}, v{o+3}')
            a(f's_add_u32 s{sT1}, s{sT0}, {1024*p}')
            a.vmop(f'buffer_store_dwordx4 v[{o}:{o+3}], v4, s[{sWS}:{sWS+3}], s{sT1} offen sc1', 'as')
    def gemm2(self):
        a = self.a
        dsf = lambda x: (lambda: a.dsop(x[0], x[1]))
        for rr in range(1, 4):
            for gl in range(11): self.h_load(rr, gl, self.hreg(rr, gl))
        a.wait_vm(['w2_7', 'w2_8', 'w2_9', 'w2_10'])
        for g in (7, 8, 9, 10):
            for x in self.w2_reads(g): a.dsop(*x)
        a(f'''
        s_lshl_b32 s{sT0}, s{sRT}, 6
        s_lshl_b32 s{sT1}, s{sW}, 4
        s_add_u32 s{sT0}, s{sT0}, s{sT1}
        s_lshl_b32 s{sT0}, s{sT0}, 2
        s_add_u32 s{sT0}, s{sT0}, {GG}
        v_and_b32 v2, 15, v{vL}
        v_lshlrev_b32 v2, 2, v2
        ''')
        a.vmop(f'buffer_load_dword v3, v2, s[{sWS}:{sWS+3}], s{sT0} offen sc1', 'g')
        a(f'''
        s_add_u32 s{sT0}, s{sW}, 1
        v_add_u32 v5, {PBUF}, v{vUd}
        ''')
        accr = lambda rr, ct: (f'a[{176+16*rr+4*ct}:{179+16*rr+4*ct}]' if rr < 3 else f'v[{40+4*ct}:{43+4*ct}]')
        for rr in range(4):
            side = []
            if rr >= 1:
                def wr(rr=rr):
                    a(f's_add_u32 s{sT0}, s{sW}, {rr}\ns_and_b32 s{sT0}, s{sT0}, 3\ns_mul_i32 s{sT0}, s{sT0}, 12288\ns_add_u32 s{sT0}, s{sT0}, {PBUF + (rr-1)*4096}')
                    a(f'v_add_u32 v5, s{sT0}, v{vUd}')
                side.append(wr)
                for ct in range(4):
                    side.append(lambda ct=ct, rr=rr: a.dsop(f'ds_write_b128 v5, {accr(rr-1, ct)} offset:{1024*ct}', 'pw'))
            if rr == 1:
                def pubA():
                    a.wait_vm('as'); a('s_barrier'); self.publish(2, 26)
                side.insert(0, pubA)
            if rr == 2: side.append(lambda: self.poll_issue(vFA, 'pA', 26))
            if rr == 3:
                def atile():
                    self.poll_check(vFA, 'pA', 26)
                    a(f'''
                    s_lshl_b32 s{sT0}, s{sCT}, 6
                    s_lshl_b32 s{sT1}, s{sW}, 4
                    s_add_u32 s{sT0}, s{sT0}, s{sT1}
                    s_lshl_b32 s{sT0}, s{sT0}, 12
                    s_lshl_b32 s{sT1}, s{sRT}, 7
                    s_add_u32 s{sT0}, s{sT0}, s{sT1}
                    s_add_u32 s{sT0}, s{sT0}, {AT}
                    s_lshl_b32 s{sT2}, s{sW}, 11
                    s_add_u32 s{sT2}, s{sT2}, {ATL}
                    ''')
                    for i in range(2):
                        a(f's_add_u32 m0, s{sT2}, {1024*i}\ns_add_u32 s{sT1}, s{sT0}, {8*4096*i}')
                        a.vmop(f'buffer_load_dwordx4 v{vAd}, s[{sWS}:{sWS+3}], s{sT1} offen sc1 lds', 'at')
                side.append(atile)
            n = 0
            for gl in range(11):
                a.wait_vm(f'h_{rr}_{gl}')
                a.wait_lg(f'w2r_{gl}')
                h = self.hreg(rr, gl)
                for ct in range(4):
                    c = '0' if gl == 0 else accr(rr, ct)
                    r = 16*gl + 4*ct
                    a(f'v_mfma_f32_16x16x32_bf16 {accr(rr, ct)}, a[{r}:{r+3}], v[{h}:{h+3}], {c}')
                    n += 1
                    if n >= 9 and side: side.pop(0)()
            while side: side.pop(0)()
            self.stamp(f'g2rr{rr}')
        a.wait_vm('at'); a.wait_lg_all()
        self.stamp('atwait')
        a('s_barrier')
        B = 40
        a(f'''
        s_mul_i32 s{sT0}, s{sW}, 12288
        s_add_u32 s{sT0}, s{sT0}, {PBUF}
        v_add_u32 v5, s{sT0}, v{vUd}
        ''')
        T = 72
        for sl in range(3):
            for ct in range(4):
                a.dsop(f'ds_read_b128 v[{T+16*sl+4*ct}:{T+16*sl+4*ct+3}], v5 offset:{sl*4096+1024*ct}', f'pr{sl}')
        Aa = 120
        for ct in range(4):
            a.dsop(f'ds_read_b64_tr_b16 v[{Aa+2*ct}:{Aa+2*ct+1}], v{vAr} offset:{2048*ct}', 'ar')
        a.wait_vm('g')
        a(f'''
        s_mov_b32 s{sK}, 0xffff0000
        v_sub_f32 v4, 1.0, v3
        v_cvt_pk_bf16_f32 v4, v4, v4
        v_lshlrev_b32 v4, 16, v4              ; 1-g (bf16)
        v_mov_b32 v6, v3
        v_mov_b32 v7, v3
        v_mov_b32 v8, v4
        v_mov_b32 v9, v4
        ''')
        for sl in range(3):
            a.wait_lg(f'pr{sl}')
            for k in range(8):
                a(f'v_pk_add_f32 v[{B+2*k}:{B+2*k+1}], v[{B+2*k}:{B+2*k+1}], v[{T+16*sl+2*k}:{T+16*sl+2*k+1}]')
        a.wait_lg('ar')
        U = 128
        def rnd(r):
            a(f'v_cvt_pk_bf16_f32 v{r}, v{r}, v{r+1}\nv_cvt_pk_bf16_f32 v{r+2}, v{r+2}, v{r+3}')
            a(f'v_and_b32 v{r+1}, s{sK}, v{r}\nv_and_b32 v{r+3}, s{sK}, v{r+2}')
            a(f'v_lshlrev_b32 v{r}, 16, v{r}\nv_lshlrev_b32 v{r+2}, 16, v{r+2}')
        for ct in range(4):
            b = B + 4*ct; u = U + 4*ct; s_ = Aa + 2*ct
            a(f'v_lshlrev_b32 v{u}, 16, v{s_}\nv_and_b32 v{u+1}, s{sK}, v{s_}')
            a(f'v_lshlrev_b32 v{u+2}, 16, v{s_+1}\nv_and_b32 v{u+3}, s{sK}, v{s_+1}')
            rnd(b)
            a(f'v_pk_mul_f32 v[{u}:{u+1}], v[{u}:{u+1}], v[6:7]\nv_pk_mul_f32 v[{u+2}:{u+3}], v[{u+2}:{u+3}], v[6:7]')
            a(f'v_pk_mul_f32 v[{b}:{b+1}], v[{b}:{b+1}], v[8:9]\nv_pk_mul_f32 v[{b+2}:{b+3}], v[{b+2}:{b+3}], v[8:9]')
            rnd(u); rnd(b)
            a(f'v_pk_add_f32 v[{b}:{b+1}], v[{b}:{b+1}], v[{u}:{u+1}]\nv_pk_add_f32 v[{b+2}:{b+3}], v[{b+2}:{b+3}], v[{u+2}:{u+3}]')
            a(f'v_cvt_pk_bf16_f32 v{u}, v{b}, v{b+1}\nv_cvt_pk_bf16_f32 v{u+1}, v{b+2}, v{b+3}')
        a(f'''
        s_mul_i32 s{sT0}, s{sW}, 20480
        v_and_b32 v10, 15, v{vL}
        v_lshrrev_b32 v11, 4, v{vL}
        v_mul_u32_u24 v10, 144, v10
        v_lshl_add_u32 v10, v11, 3, v10
        v_add_u32 v10, s{sT0}, v10
        v_lshrrev_b32 v11, 3, v{vL}
        v_and_b32 v12, 7, v{vL}
        v_mul_u32_u24 v13, 144, v11
        v_lshl_add_u32 v13, v12, 4, v13
        v_add_u32 v13, s{sT0}, v13
        v_lshlrev_b32 v11, 10, v11
        v_lshl_add_u32 v11, v12, 4, v11
        s_lshl_b32 s{sT0}, s{sRT}, 6
        s_lshl_b32 s{sT1}, s{sW}, 4
        s_add_u32 s{sT0}, s{sT0}, s{sT1}
        s_lshl_b32 s{sT0}, s{sT0}, 10
        s_lshl_b32 s{sT1}, s{sCT}, 7
        s_add_u32 s{sT0}, s{sT0}, s{sT1}
        ''')
        for ct in range(4):
            a.dsop(f'ds_write_b64 v10, v[{U+4*ct}:{U+4*ct+1}] offset:{32*ct}', 'ow')
        a.wait_lg_all()
        for hf in range(2):
            a.dsop(f'ds_read_b128 v[{16+4*hf}:{19+4*hf}], v13 offset:{8*144*hf}', f'or{hf}')
        for hf in range(2):
            a.wait_lg(f'or{hf}')
            a(f's_add_u32 s{sT1}, s{sT0}, {8192*hf}')
            a.vmop(f'buffer_store_dwordx4 v[{16+4*hf}:{19+4*hf}], v11, s[{sOUT}:{sOUT+3}], s{sT1} offen', 'o')
    def finish(self):
        a = self.a
        if self.stamps:
            a('s_waitcnt vmcnt(0)')
            self.stamp('final')
            a(f's_memrealtime s[{sST}:{sST+1}]\ns_waitcnt lgkmcnt(0)\nv_writelane_b32 v31, s{sST}, 63')
            a(f'''
            s_lshl_b32 s{sT0}, s2, 2
            s_add_u32 s{sT0}, s{sT0}, s{sW}
            s_lshl_b32 s{sT0}, s{sT0}, 8
            s_add_u32 s{sT0}, s{sT0}, {STAMP}
            v_lshlrev_b32 v30, 2, v{vL}
            buffer_store_dword v31, v30, s[{sWS}:{sWS+3}], s{sT0} offen
            ''')
        a('s_waitcnt vmcnt(0)')
        a.label('END')
    def build(self):
        self.stamp0 = True
        self.prologue(); self.stamp('prologue')
        self.tphase(); self.stamp('T')
        self.kgen(); self.stamp('kgen')
        self.gemm1_phase(); self.stamp('gemm1')
        self.conv(); self.stamp('convepi')
        self.gemm2(); self.stamp('g2epi')
        self.finish()
        return self.a.text()

HEADER = open('gated_mix__ssm_conv_s4__dense_activation_relu__prompt.s.ref').read().split('; Override launch')[0]
def full(stamps=False):
    global NST, NAMES
    g = G(stamps); body = g.build(); NST = g.nst; NAMES = getattr(g, 'names', [])
    return HEADER + f"""; Generated by my own generator script (work/gen.py); single fused launch, 256 workgroups, one per CU.
; @launch grid=(256,1,1) block=(256,1,1) lds=163840
.amdgcn_target "amdgcn-amd-amdhsa--gfx950"
.text
.globl {KNAME}
.p2align 8
.type {KNAME},@function
{KNAME}:
{body}s_endpgm
.section .rodata,"a"
.p2align 6
.amdhsa_kernel {KNAME}
  .amdhsa_next_free_vgpr 512
  .amdhsa_next_free_sgpr 102
  .amdhsa_accum_offset 256
  .amdhsa_group_segment_fixed_size 0
  .amdhsa_kernarg_size 128
  .amdhsa_user_sgpr_count 2
  .amdhsa_user_sgpr_kernarg_segment_ptr 1
  .amdhsa_system_sgpr_workgroup_id_x 1
.end_amdhsa_kernel
"""
if __name__ == '__main__':
    out = sys.argv[1] if len(sys.argv) > 1 else 'gated_mix__ssm_conv_s4__dense_activation_relu__prompt.s'
    open(out, 'w').write(full(len(sys.argv) > 2))
    print('written', out)
```
